```python
import torch

def _softmax(x, axis=-1):
    return torch.softmax(x, dim=axis)
def _gelu(x):
    return torch.nn.functional.gelu(x, approximate="tanh")
def _silu(x):
    return torch.nn.functional.silu(x)
def _sigmoid(x):
    return torch.sigmoid(x)
def _layernorm(x, axis=-1, eps=1e-5):
    m = x.mean(dim=axis, keepdim=True)
    v = x.var(dim=axis, keepdim=True, unbiased=False)
    return (x - m) / torch.sqrt(v + eps)
def _scatter_add(tgt, idx, src, axis=0):
    return tgt.clone().index_add_(axis, idx, src)
def _segment_sum(src, seg, n):
    out = torch.zeros((n,) + src.shape[1:], dtype=src.dtype)
    return out.index_add_(0, seg, src)
def _pad(x, pw):
    flat = tuple(v for pair in reversed(pw) for v in pair)
    return torch.nn.functional.pad(x, flat)

kernel_name = 'sequential_preLN__sliding_local_dilated__glu_gated_geglu__prompt'

def setup_inputs():

    _w = (lambda a: (lambda t: t.to(torch.bfloat16) if t.is_floating_point() else t)(torch.as_tensor(a)))
    def _A_setup():
        B, S, D = 1, 2048, 1024
        return {
            "x": _w((lambda *s: torch.randn(*s, dtype=torch.bfloat16) * 0.05)(B, S, D)),
            "wqkv": _w((lambda *s: torch.randn(*s, dtype=torch.bfloat16) * 0.05)(D, 3 * D)),
            "wo": _w((lambda *s: torch.randn(*s, dtype=torch.bfloat16) * 0.05)(D, D)),
        }
    _A_in = _A_setup()

    def _B_setup():
        B, S, Dm, Df = 1, 2048, 1024, 3584
        return {
            "x": _w((lambda *s: torch.randn(*s, dtype=torch.bfloat16) * 0.05)(B, S, Dm)),
            "w_gate": _w((lambda *s: torch.randn(*s, dtype=torch.bfloat16) * 0.8)(Dm, Df) * (Dm ** -0.5)),
            "w_up": _w((lambda *s: torch.randn(*s, dtype=torch.bfloat16) * 0.8)(Dm, Df) * (Dm ** -0.5)),
            "w_down": _w((lambda *s: torch.randn(*s, dtype=torch.bfloat16) * 0.8)(Df, Dm) * (Df ** -0.5)),
        }
    _B_in = _B_setup()

    return {
        "A_x": _A_in["x"],
        "A_wqkv": _A_in["wqkv"],
        "A_wo": _A_in["wo"],
        "B_x": _B_in["x"],
        "B_w_gate": _B_in["w_gate"],
        "B_w_up": _B_in["w_up"],
        "B_w_down": _B_in["w_down"],
    }

def reference(A_x, A_wqkv, A_wo, B_x, B_w_gate, B_w_up, B_w_down):
    def _A_ref(x, wqkv, wo):
        B, S, D = x.shape
        H = 32; Dh = D // H
        W, dil = 8, 2
        qkv = (lambda x, *d: x.permute(*d))((x @ wqkv).reshape(B, S, 3, H, Dh), 2, 0, 3, 1, 4)
        q, k, v = qkv[0], qkv[1], qkv[2]
        scale = Dh ** -0.5
        pos = torch.arange(S)
        off = torch.arange(W) * dil
        idx = pos[:, None] - off[None, :]
        mask = idx >= 0
        idx_c = torch.where(mask, idx, 0).reshape(-1)
        kg = k[:, :, idx_c, :].reshape(B, H, S, W, Dh)
        vg = v[:, :, idx_c, :].reshape(B, H, S, W, Dh)
        logits = torch.einsum("bhsd,bhswd->bhsw", q, kg) * scale
        logits = torch.where(mask[None, None, :, :], logits, -1e9)
        attn = _softmax(logits, axis=-1)
        o = torch.einsum("bhsw,bhswd->bhsd", attn, vg)
        return (lambda x, *d: x.permute(*d))(o, 0, 2, 1, 3).reshape(B, S, D) @ wo

    def _B_ref(x, w_gate, w_up, w_down):
        g = torch.einsum("bsd,df->bsf", x, w_gate)
        u = torch.einsum("bsd,df->bsf", x, w_up)
        h = _gelu(g) * u
        return torch.einsum("bsf,fd->bsd", h, w_down)

    x = A_x
    h = x + _A_ref(_layernorm(x, axis=-1), A_wqkv, A_wo)
    h2 = h + _B_ref(_layernorm(h, axis=-1), B_w_gate, B_w_up, B_w_down)
    return h2
```

```python
WS_O   = 0
WS_H   = 4 << 20
WS_HH  = 8 << 20
WS_ST2 = 24 << 20
WS_ST1 = 25 << 20
WS_CS  = 26 << 20
WS_BYTES = 268435456

KA_X, KA_WQKV, KA_WO, KA_BX, KA_WG, KA_WU, KA_WD, KA_OUT, KA_DBG, KA_WS = [8*i for i in range(10)]


class Asm:
    def __init__(self):
        self.L = []
        self.uid = 0
    def __call__(self, s):
        for line in s.split("\n"):
            line = line.strip()
            if line:
                self.L.append(line)
    def label(self, base="L"):
        self.uid += 1
        return f"{base}_{self.uid}"
    def comment(self, s):
        self.L.append("; " + s)
    def text(self):
        return "\n".join(self.L) + "\n"


def kernel_header(a, name):
    a(f".globl {name}")
    a(".p2align 8")
    a(f".type {name},@function")
    a(f"{name}:")


def kernel_desc(name, vgpr, sgpr, accum):
    return f""".p2align 6
.amdhsa_kernel {name}
  .amdhsa_next_free_vgpr {vgpr}
  .amdhsa_next_free_sgpr {sgpr}
  .amdhsa_accum_offset {accum}
  .amdhsa_group_segment_fixed_size 0
  .amdhsa_kernarg_size 80
  .amdhsa_user_sgpr_count 2
  .amdhsa_user_sgpr_kernarg_segment_ptr 1
  .amdhsa_system_sgpr_workgroup_id_x 1
  .amdhsa_float_denorm_mode_32 3
  .amdhsa_float_denorm_mode_16_64 3
.end_amdhsa_kernel
"""


def srd(a, d, base, nbytes, add_lo=None, add_imm=0):
    if add_lo is not None:
        a(f"s_add_u32 s{d}, s{base}, s{add_lo}")
        a(f"s_addc_u32 s{d+1}, s{base+1}, 0")
        if add_imm:
            a(f"s_add_u32 s{d}, s{d}, {add_imm}")
            a(f"s_addc_u32 s{d+1}, s{d+1}, 0")
    elif add_imm:
        a(f"s_add_u32 s{d}, s{base}, {add_imm}")
        a(f"s_addc_u32 s{d+1}, s{base+1}, 0")
    else:
        a(f"s_mov_b32 s{d}, s{base}")
        a(f"s_mov_b32 s{d+1}, s{base+1}")
    a(f"s_mov_b32 s{d+2}, {nbytes}")
    a(f"s_mov_b32 s{d+3}, 0x20000")


def interleave(main, fill, start=0, every=1):
    out = []
    fi = 0
    for i, m in enumerate(main):
        out.append(m)
        if i >= start and (i - start) % every == 0 and fi < len(fill):
            out.append(fill[fi]); fi += 1
    out.extend(fill[fi:])
    return out


import os
STAMP = bool(os.environ.get("STAMP"))
TMH = os.environ.get("TMH", "1") == "1"
TM = os.environ.get("TM", "1") == "1"
def stamp(a, idx):
    if not STAMP: return
    b = 64 + 4*idx
    a(f"s_memtime s[{b}:{b+1}]")
    a(f"s_memrealtime s[{b+2}:{b+3}]")
    a("s_waitcnt lgkmcnt(0)")

WS_DBG = 28 << 20
KIDX = [0]
def stamp_flush(a, n, wave_sgpr, v0=12):
    if not STAMP: return
    L = a.label("Lsf")
    a(f"s_cmp_lg_u32 s{wave_sgpr}, {int(os.environ.get('STAMP_WAVE', '0'))}")
    a(f"s_cbranch_scc1 {L}")
    a(f"s_load_dwordx2 s[96:97], s[0:1], {KA_WS}")
    a("s_waitcnt lgkmcnt(0)")
    a(f"s_add_u32 s96, s96, {WS_DBG + KIDX[0]*65536}")
    a("s_addc_u32 s97, s97, 0")
    KIDX[0] += 1
    a("s_mov_b32 s98, 65536")
    a("s_mov_b32 s99, 0x20000")
    a("s_lshl_b32 s94, s2, 6")
    a(f"v_mov_b32 v{v0+2}, s94")
    for i in range(n):
        b = 64 + 4*i
        a(f"v_mov_b32 v{v0}, s{b}")
        a(f"v_mov_b32 v{v0+1}, s{b+2}")
        a(f"buffer_store_dwordx2 v[{v0}:{v0+1}], v{v0+2}, s[96:99], 0 offen offset:{8*i}")
        a("s_nop 1")
    a(f"{L}:")

STF = os.environ.get("STF", "")

WS_FLG = 27 << 20
FLG = {"o": (0, 16), "h": (16, 16), "hh": (32, 32), "cs": (48, 224)}

def flag_srd(a, d, ws_pair=32):
    srd(a, d, ws_pair, 72*128, add_imm=WS_FLG)

def flag_signal(a, d, kind, idx_sgpr, v=5):
    a(f"s_add_u32 s43, s{idx_sgpr}, {FLG[kind][0]}")
    a("s_lshl_b32 s43, s43, 7")
    a(f"v_mov_b32 v{v}, s43")
    a(f"v_mov_b32 v{v+1}, 1")
    a("s_mov_b64 exec, 1")
    a(f"buffer_atomic_add v{v+1}, v{v}, s[{d}:{d+3}], 0 offen sc1")
    a("s_mov_b64 exec, -1")

def flag_poll(a, d, kind, msgpr, v=8, lane=1):
    base, target = FLG[kind]
    if kind in ("o", "cs"): a(f"s_add_u32 s43, s{msgpr}, {base}")
    elif kind == "h":
        a(f"s_lshl_b32 s43, s{msgpr}, 1"); a(f"s_add_u32 s43, s43, {base}")
    else:
        a(f"s_lshr_b32 s43, s{msgpr}, 1"); a(f"s_add_u32 s43, s43, {base}")
    a("s_lshl_b32 s43, s43, 7")
    if kind == "h":
        a(f"v_and_b32 v{v}, 1, v{lane}")
        a(f"v_lshlrev_b32 v{v}, 7, v{v}")
        a(f"v_add_u32 v{v}, s43, v{v}")
    else:
        a(f"v_mov_b32 v{v}, s43")
    Lp = a.label("Lpoll"); Lo = a.label("Lpok")
    a("s_mov_b32 s41, 0x10000")
    a(f"{Lp}:")
    a(f"buffer_load_dword v{v+1}, v{v}, s[{d}:{d+3}], 0 offen sc1")
    a("s_waitcnt vmcnt(0)")
    a(f"v_mov_b32 v{v+2}, {target}")
    a(f"v_cmp_ne_u32 vcc, v{v+2}, v{v+1}")
    a("s_nop 4")
    a(f"s_cbranch_vccz {Lo}")
    a("s_sub_u32 s41, s41, 1")
    a("s_cmp_lg_u32 s41, 0")
    a(f"s_cbranch_scc1 {Lp}")
    a(f"{Lo}:")


def pf_g2_w(a, W_ka, K, groups, sd, v, vd, lane=1):
    a(f"s_load_dwordx2 s[{sd+4}:{sd+5}], s[0:1], {W_ka}")
    a("s_bfe_u32 s43, s2, 0x10002")
    a("s_lshl_b32 s43, s43, 3")
    a("s_lshr_b32 s44, s2, 5")
    a("s_add_u32 s43, s43, s44")
    a("s_lshl_b32 s43, s43, 7")
    a("s_bfe_u32 s44, s2, 0x20003")
    a("s_lshl_b32 s44, s44, 4")
    a(f"v_and_b32 v{v}, 15, v{lane}")
    a(f"v_add_u32 v{v}, s44, v{v}")
    a(f"v_lshrrev_b32 v{vd}, 4, v{lane}")
    a(f"v_lshl_add_u32 v{v}, v{vd}, 6, v{v}")
    a(f"v_lshlrev_b32 v{v}, 11, v{v}")
    a("s_waitcnt lgkmcnt(0)")
    srd(a, sd, sd+4, K*2048 - 1920, add_lo=43)
    for g in groups:
        a(f"s_mov_b32 s43, {g*524288}")
        a(f"buffer_load_dword v{vd}, v{v}, s[{sd}:{sd+3}], s43 offen")
    return len(groups)

def pf_k3_w(a, nst, sd, v, vd, lane=1):
    a(f"s_load_dwordx4 s[{sd+8}:{sd+11}], s[0:1], {KA_WG}")
    a("s_bfe_u32 s43, s2, 0x20001")
    a("s_lshl_b32 s43, s43, 3")
    a("s_lshr_b32 s44, s2, 5")
    a("s_add_u32 s43, s43, s44")
    a("s_mul_i32 s43, s43, 224")
    a("s_bfe_u32 s44, s2, 0x20003")
    a("s_lshl_b32 s44, s44, 4")
    a("s_waitcnt lgkmcnt(0)")
    srd(a, sd, sd+8, 1023*7168 + 224, add_lo=43)
    srd(a, sd+4, sd+10, 1023*7168 + 224, add_lo=43)
    n = 0
    for i in range(nst*48//64):
        a(f"v_add_u32 v{v}, {64*i}, v{lane}")
        a(f"v_mul_u32_u24 v{vd}, 21846, v{v}")
        a(f"v_lshrrev_b32 v{vd}, 16, v{vd}")
        a(f"v_mul_u32_u24 v{v+1}, 3, v{vd}")
        a(f"v_sub_u32 v{v}, v{v}, v{v+1}")
        a(f"v_mul_u32_u24 v{v}, 108, v{v}")
        a(f"v_lshrrev_b32 v{v+1}, 4, v{vd}")
        a(f"v_and_b32 v{vd}, 15, v{vd}")
        a(f"v_lshl_add_u32 v{vd}, v{v+1}, 6, v{vd}")
        a(f"v_add_u32 v{vd}, s44, v{vd}")
        a(f"v_mul_u32_u24 v{vd}, 7168, v{vd}")
        a(f"v_add_u32 v{v}, v{v}, v{vd}")
        a(f"buffer_load_dword v{vd+2}, v{v}, s[{sd}:{sd+3}], 0 offen")
        a(f"buffer_load_dword v{vd+2}, v{v}, s[{sd+4}:{sd+7}], 0 offen")
        n += 2
    return n


CS_NF = 28
def cs_setup(a, Lno, sd, va):
    a("s_lshr_b32 s43, s2, 1")
    a("s_cmp_ge_u32 s43, 112")
    a(f"s_cbranch_scc1 {Lno}")
    a("s_and_b32 s44, s2, 1")
    a("s_lshl_b32 s45, s44, 3")
    a(f"s_add_u32 s45, s45, {KA_WG}")
    a(f"s_load_dwordx2 s[{sd+4}:{sd+5}], s[0:1], s45")
    a("s_mul_i32 s45, s43, 2341")
    a("s_lshr_b32 s45, s45, 16")
    a("s_mul_i32 s46, s45, 28")
    a("s_sub_u32 s46, s43, s46")
    a(f"v_lshrrev_b32 v{va}, 4, v1")
    a("s_lshl_b32 s43, s45, 8")
    a(f"v_add_u32 v{va}, s43, v{va}")
    a(f"v_mul_u32_u24 v{va}, 7168, v{va}")
    a(f"v_and_b32 v{va+1}, 15, v1")
    a(f"v_lshl_add_u32 v{va}, v{va+1}, 4, v{va}")
    a("s_lshl_b32 s43, s46, 8")
    a(f"v_add_u32 v{va}, s43, v{va}")
    a("s_waitcnt lgkmcnt(0)")
    srd(a, sd, sd+4, 7340032)

def cs_issue(a, n, sd, va):
    i = n % CS_NF
    a(f"s_mov_b32 s43, {n*4*7168}")
    a(f"buffer_load_dwordx4 v[{128+4*i}:{128+4*i+3}], v{va}, s[{sd}:{sd+3}], s43 offen")


DYN = int(os.environ.get("DYN", "0"))
def flag_tile_signal(a, d, m_sgpr, n_sgpr, v=5):
    a(f"s_add_u32 s43, s{m_sgpr}, 64")
    a("s_lshl_b32 s43, s43, 7")
    a(f"s_lshl_b32 s44, s{n_sgpr}, 2")
    a("s_add_u32 s43, s43, s44")
    a(f"v_mov_b32 v{v}, s43")
    a(f"v_mov_b32 v{v+1}, 1")
    a("s_mov_b64 exec, 1")
    a(f"buffer_store_dword v{v+1}, v{v}, s[{d}:{d+3}], 0 offen sc1")
    a("s_mov_b64 exec, -1")
```

```python
import os, struct
from common import *

NS = 3
XB_ = 18432
STG1 = XB_ + 3*8192
RST = NS*STG1
CSUM = RST + 1152
LST = CSUM
LDS_K1 = CSUM + 768
QKV = 0
QP = 400
OST = 61440

def fh(x): return "0x%08x" % struct.unpack("<I", struct.pack("<f", x))[0]

VGPR_K1 = 240
def phase_k1(a, Ld, signal=None, last=True, cspre=False):
    strip = os.environ.get("K1_STRIP", "")
    nst = 16
    SF = " sc1" if signal is not None else ""
    stamp(a, 0)
    a(f"s_load_dwordx4 s[4:7], s[0:1], {KA_X}")
    a(f"s_load_dwordx2 s[32:33], s[0:1], {KA_WS}")
    a("s_and_b32 s3, s2, 7")
    a("s_lshr_b32 s42, s2, 3")
    a("s_and_b32 s34, s3, 1")
    a("s_lshl_b32 s34, s34, 3")
    a("s_and_b32 s48, s42, 7")
    a("s_add_u32 s34, s34, s48")
    a("s_lshr_b32 s35, s3, 1")
    a("s_lshr_b32 s49, s42, 3")
    if os.environ.get("NSPREAD", "0") == "1":
        a("s_lshl_b32 s43, s49, 2")
        a("s_add_u32 s35, s35, s43")
    else:
        a("s_lshl_b32 s35, s35, 2")
        a("s_add_u32 s35, s35, s49")
    if os.environ.get("K1_SAME"):
        a("s_mov_b32 s34, 1"); a("s_mov_b32 s35, 0")
    a("v_lshrrev_b32 v12, 6, v0")
    a("v_and_b32 v1, 63, v0")
    a("v_readfirstlane_b32 s36, v12")
    a("s_lshl_b32 s43, s35, 7")
    a("s_lshl_b32 s44, s34, 18")
    a("s_add_u32 s45, s44, s43")
    if TM:
        a("s_lshl_b32 s45, s35, 18")
        a("s_lshl_b32 s44, s34, 14")
        a("s_add_u32 s45, s45, s44")
    a("s_lshl_b32 s50, s34, 7")
    a("s_sub_u32 s50, s50, 16")
    a("s_waitcnt lgkmcnt(0)")
    srd(a, 8, 4, 2048*2048)
    srd(a, 12, 6, 1023*6144 + 4096 + 128, add_lo=43)
    srd(a, 16, 32, 16384 if TM else 127*2048 + 128, add_lo=45, add_imm=WS_O)
    Lprod = a.label("Lprod"); Lpf = a.label("Lpf"); Latt = a.label("Latt")
    a("v_and_b32 v12, 15, v1")
    a("v_lshrrev_b32 v13, 4, v1")
    a("s_cmp_ge_u32 s36, 4")
    a(f"s_cbranch_scc1 {Lprod}")

    a("v_lshrrev_b32 v16, 1, v12")
    a("v_xor_b32 v15, v13, v16")
    a("v_lshlrev_b32 v15, 4, v15")
    a("v_lshl_add_u32 v2, v12, 7, v15")
    a("v_xor_b32 v3, 64, v2")
    a(f"v_add_u32 v4, {2*STG1}, v2")
    a(f"v_add_u32 v5, {2*STG1}, v3")
    a("v_lshrrev_b32 v15, 2, v12")
    a("v_and_b32 v16, 3, v1")
    a("v_lshl_add_u32 v19, v13, 3, v15")
    a("v_lshlrev_b32 v19, 7, v19")
    a("v_and_b32 v15, 2, v15")
    a("v_and_b32 v17, 1, v13")
    a("v_lshl_add_u32 v15, v17, 2, v15")
    a("v_lshrrev_b32 v17, 1, v16")
    a("s_lshl_b32 s43, s36, 1")
    a("v_add_u32 v17, s43, v17")
    a("v_xor_b32 v15, v15, v17")
    a("v_lshl_add_u32 v19, v15, 4, v19")
    a("v_and_b32 v16, 1, v16")
    a("v_lshl_add_u32 v19, v16, 3, v19")
    for sl in range(3):
        a(f"v_add_u32 v{6+sl}, {XB_ + sl*STG1}, v19")
    ACC = 128
    def accreg(seg, mt):
        return ACC + 36*seg + 4*mt
    for i in range(108): a(f"v_mov_b32 v{ACC+i}, 0")
    SET = [32, 80]
    def reads(s, kk, base):
        sl = s % NS
        xb = (2 + kk) if sl < 2 else (4 + kk)
        xo = (sl % 2)*STG1 if sl < 2 else 0
        def xr(mt): return f"ds_read_b128 v[{base+4*mt}:{base+4*mt+3}], v{xb} offset:{xo + mt*2048}"
        def wr(sg, h): return f"ds_read_b64_tr_b16 v[{base+36+4*sg+2*h}:{base+36+4*sg+2*h+1}], v{6+sl} offset:{sg*8192 + kk*4096 + h*512}"
        return [xr(0), wr(1,0), wr(1,1), wr(2,0), wr(2,1), wr(0,0), wr(0,1)] + [xr(m) for m in range(1, 9)]
    def mfmas(base):
        r = []
        for mt in range(9):
            for sg in (1, 2, 0):
                acc = accreg(sg, mt)
                r.append(f"v_mfma_f32_16x16x32_bf16 v[{acc}:{acc+3}], v[{base+36+4*sg}:{base+36+4*sg+3}], v[{base+4*mt}:{base+4*mt+3}], v[{acc}:{acc+3}]")
        return r
    def emit(seq):
        for i in seq:
            if "m" in strip and i.startswith("v_mfma"): continue
            if "r" in strip and i.startswith("ds_read"): continue
            a(i)
    a("s_barrier")
    stamp(a, 1)
    for i in reads(0, 0, SET[0]): a(i)
    def cstage(s, last):
        a("s_waitcnt lgkmcnt(0)")
        emit(interleave(mfmas(SET[0]), reads(s, 1, SET[1]), 0, 1))
        a("s_waitcnt lgkmcnt(0)")
        a("s_barrier")
        emit(interleave(mfmas(SET[1]), [] if last else reads(s+1, 0, SET[0]), 0, 1))
    if os.environ.get("STAMP2"):
        for s in range(nst):
            cstage(s, s == nst-1)
            a(f"s_memrealtime s[{64+2*s}:{65+2*s}]")
        a("s_waitcnt lgkmcnt(0)")
        Lq = a.label("Lq")
        a("s_cmp_lg_u32 s36, 0")
        a(f"s_cbranch_scc1 {Lq}")
        a(f"s_add_u32 s96, s32, {WS_DBG}")
        a("s_addc_u32 s97, s33, 0")
        a("s_mov_b32 s98, 65536")
        a("s_mov_b32 s99, 0x20000")
        a("s_lshl_b32 s43, s2, 6")
        a("v_mov_b32 v14, s43")
        for s in range(16):
            a(f"v_mov_b32 v15, s{64+2*s}")
            a(f"buffer_store_dword v15, v14, s[96:99], 0 offen offset:{4*s}")
            a("s_nop 1")
        a(f"{Lq}:")
    else:
        nl = (nst-1)//NS
        a(f"s_mov_b32 s41, {nl}")
        Ll = a.label("Lcl")
        a(f"{Ll}:")
        for s in range(NS): cstage(s, False)
        a("s_sub_u32 s41, s41, 1")
        a("s_cmp_lg_u32 s41, 0")
        a(f"s_cbranch_scc1 {Ll}")
        for s in range(nl*NS, nst): cstage(s, s == nst-1)
    stamp(a, 2)
    a("s_barrier")
    a(f"v_lshlrev_b32 v14, 3, v12")
    a(f"v_add_u32 v14, {RST}, v14")
    for mt in range(9):
        a(f"ds_read_b64 v[{32+2*mt}:{33+2*mt}], v14 offset:{mt*128}")
    for sg in range(3):
        for r in range(4):
            a(f"v_mov_b32_dpp v{52+4*sg+r}, v{accreg(sg,0)+r} row_newbcast:0 row_mask:0xf bank_mask:0xf")
    a(f"v_mul_u32_u24 v14, {QP}, v12")
    a("v_lshl_add_u32 v14, v13, 3, v14")
    a("s_lshl_b32 s43, s36, 5")
    a("v_add_u32 v14, s43, v14")
    a("s_waitcnt lgkmcnt(0)")
    for mt in range(9):
        for sg in ((1, 2) if mt == 0 else (0, 1, 2)):
            acc = accreg(sg, mt)
            for r in range(4):
                a(f"v_fma_f32 v{acc+r}, -v{32+2*mt}, v{52+4*sg+r}, v{acc+r}")
            for r in range(4):
                a(f"v_mul_f32 v{acc+r}, v{33+2*mt}, v{acc+r}")
            a(f"v_cvt_pk_bf16_f32 v{acc}, v{acc}, v{acc+1}")
            a(f"v_cvt_pk_bf16_f32 v{acc+1}, v{acc+2}, v{acc+3}")
            a(f"ds_write_b64 v14, v[{acc}:{acc+1}] offset:{QKV + mt*16*QP + sg*128}")
    a("s_waitcnt lgkmcnt(0)")
    a(f"s_branch {Latt}")

    a(f"{Lprod}:")
    PST = os.environ.get("STAMP_WAVE", "0") != "0"
    a("s_sub_u32 s47, s36, 4")
    a("s_lshl_b32 s43, s34, 7")
    a("s_lshl_b32 s44, s35, 3")
    a("s_add_u32 s43, s43, s44")
    a("s_mov_b32 s63, s43")
    a("s_lshl_b32 s44, s47, 1")
    a("s_add_u32 s51, s43, s44")
    a("v_lshlrev_b32 v10, 4, v1")
    srd(a, 20, 32, 2048*8, add_imm=WS_ST1)
    def rows_load(srow, dst=96, add=0):
        a(f"s_lshl_b32 s43, s{srow}, 11")
        if add: a(f"s_add_u32 s43, s43, {add*2048}")
        for q in range(4):
            a(f"buffer_load_dwordx4 v[{dst+4*q}:{dst+4*q+3}], v10, s[8:11], s43 offen offset:{q*1024}")
    def rows_stats(srcb=96):
        for r in range(2):
            sa, qa = 116+4*r, 118+4*r
            for i in range(8):
                src = srcb + 8*r + i
                t = 124 + 2*(i & 1)
                a(f"v_lshlrev_b32 v{t}, 16, v{src}")
                a(f"v_and_b32 v{t+1}, 0xffff0000, v{src}")
                if i == 0:
                    a(f"v_mov_b32 v{sa}, v{t}"); a(f"v_mov_b32 v{sa+1}, v{t+1}")
                    a(f"v_mul_f32 v{qa}, v{t}, v{t}"); a(f"v_mul_f32 v{qa+1}, v{t+1}, v{t+1}")
                else:
                    a(f"v_add_f32 v{sa}, v{sa}, v{t}"); a(f"v_add_f32 v{sa+1}, v{sa+1}, v{t+1}")
                    a(f"v_fmac_f32 v{qa}, v{t}, v{t}"); a(f"v_fmac_f32 v{qa+1}, v{t+1}, v{t+1}")
        R = [116, 118, 120, 122]
        for x in R: a(f"v_add_f32 v{x}, v{x}, v{x+1}")
        a("s_nop 0")
        for sh in (8, 4, 2, 1):
            for x in R: a(f"v_add_f32_dpp v{x}, v{x}, v{x} row_ror:{sh} row_mask:0xf bank_mask:0xf")
        for sw in ("16", "32"):
            for x in R: a(f"v_mov_b32 v{x+1}, v{x}")
            a("s_nop 0")
            for x in R: a(f"v_permlane{sw}_swap_b32 v{x}, v{x+1}")
            for x in R: a(f"v_add_f32 v{x}, v{x}, v{x+1}")
        for r in range(2):
            sv, qv, o = 116+4*r, 118+4*r, 112+2*r
            a(f"v_mul_f32 v{o}, 0x3a800000, v{sv}")
            a(f"v_mul_f32 v{o+1}, 0x3a800000, v{qv}")
            a(f"v_fma_f32 v{o+1}, -v{o}, v{o}, v{o+1}")
            a(f"v_max_f32 v{o+1}, 0, v{o+1}")
            a(f"v_add_f32 v{o+1}, 0x3727c5ac, v{o+1}")
            a(f"v_rsq_f32 v{o+1}, v{o+1}")
        a("s_nop 0")
    def epi_pf():
        if os.environ.get("K1_EPF", "0") != "1": return
        a(f"s_load_dwordx4 s[24:27], s[0:1], {KA_WG}")
        a("v_lshlrev_b32 v15, 7, v1")
        a("s_mul_i32 s43, s2, 28672")
        a("s_lshl_b32 s44, s47, 13")
        a("s_add_u32 s43, s43, s44")
        a("v_add_u32 v15, s43, v15")
        a("s_waitcnt lgkmcnt(0)")
        srd(a, 88, 24, 7340032)
        srd(a, 84, 26, 7340032)
        a("buffer_load_dword v30, v15, s[88:91], 0 offen")
        a("buffer_load_dword v31, v15, s[84:87], 0 offen")
    def rows_local():
        a("s_lshl_b32 s43, s47, 4")
        a(f"s_add_u32 s43, s43, {LST}")
        a("v_mov_b32 v11, s43")
        a("ds_write_b128 v11, v[112:115]")
        a("s_waitcnt lgkmcnt(0)")
    def rows_publish(q):
        a("s_lshl_b32 s43, s63, 3")
        a("v_mov_b32 v11, s43")
        a("s_mov_b64 exec, 1")
        a(f"buffer_store_dwordx4 v[112:115], v11, s[20:23], 0 offen offset:{16*q} sc1")
        a("s_mov_b64 exec, -1")
        a("s_nop 0")
    a("s_cmp_eq_u32 s47, 3")
    a(f"s_cbranch_scc1 {Lpf}")
    if PST: stamp(a, 1)
    a("v_lshrrev_b32 v14, 3, v1")
    a("v_and_b32 v15, 7, v1")
    a("v_and_b32 v16, 2, v14")
    a("v_xor_b32 v16, v15, v16")
    a("v_lshlrev_b32 v16, 4, v16")
    a("v_mul_u32_u24 v17, 6144, v14")
    a("s_lshl_b32 s43, s47, 11")
    a("v_add3_u32 v2, v17, v16, s43")
    a("v_xor_b32 v3, 64, v2")
    a("v_lshrrev_b32 v16, 1, v14")
    a("v_xor_b32 v16, v15, v16")
    a("v_lshlrev_b32 v16, 4, v16")
    a("s_lshl_b32 s43, s47, 3")
    a("s_add_u32 s43, s43, s50")
    a("v_add_u32 v17, s43, v14")
    a("s_and_b32 s44, s47, 1")
    a("s_lshl_b32 s44, s44, 6")
    for i in range(6):
        a(f"v_add_u32 v18, {24*i}, v17")
        a("v_max_i32 v18, 0, v18")
        a("v_lshl_add_u32 v18, v18, 11, v16")
        a("v_xor_b32 v18, s44, v18")
        if i & 1: a(f"v_xor_b32 v{4+i}, 64, v18")
        else: a(f"v_mov_b32 v{4+i}, v18")
    a("s_lshl_b32 s39, s47, 10")
    a("s_lshl_b32 s40, s47, 13")
    a(f"s_add_u32 s40, s40, {XB_}")
    a("s_mov_b32 s37, 0")
    a("s_mov_b32 s38, 0")
    a("s_bfm_b64 s[60:61], 56, 8")
    a("s_cmp_eq_u32 s47, 0")
    a("s_cselect_b64 s[60:61], s[60:61], -1")
    def dma(slot):
        for i in range(6):
            a(f"s_add_u32 m0, s39, {slot*STG1 + i*3072}")
            a("s_mov_b64 exec, s[60:61]" if i == 0 else "s_nop 0")
            if "d" not in strip: a(f"buffer_load_dwordx4 v{4+i}, s[8:11], s37 offen lds")
            if i == 0: a("s_mov_b64 exec, -1")
        for j in range(8):
            a(f"s_add_u32 m0, s40, {slot*STG1 + j*1024}")
            a(f"s_add_u32 s43, s38, {8*j*6144}")
            if "d" not in strip: a(f"buffer_load_dwordx4 v{2+(j&1)}, s[12:15], s43 offen lds")
        a("s_add_u32 s37, s37, 128")
        a(f"s_add_u32 s38, s38, {64*6144}")
    if PST: stamp(a, 2)
    for sl in range(NS): dma(sl)
    rows_load(51)
    if PST: stamp(a, 3)
    a(f"s_waitcnt vmcnt({14*(NS-1) + 4})")
    if PST: stamp(a, 4)
    a("s_barrier")
    def pstage(s, do_dma, vm, extra=None):
        if do_dma: dma((s+2) % NS)
        if extra: extra()
        if vm is not None: a(f"s_waitcnt vmcnt({vm})")
        a("s_barrier")
    pstage(0, False, 14 + 4)
    pstage(1, True, 14)
    def loc():
        rows_stats(); rows_local()
    pstage(2, True, 14, loc)
    pstage(3, True, 14)
    a(f"s_mov_b32 s41, 3")
    Lp = a.label("Lpl")
    a(f"{Lp}:")
    for s in range(4, 7): pstage(s, True, 14)
    a("s_sub_u32 s41, s41, 1")
    a("s_cmp_lg_u32 s41, 0")
    a(f"s_cbranch_scc1 {Lp}")
    pstage(13, True, 14)
    pstage(14, False, 0)
    epi_pf()
    pstage(15, False, None)
    a("s_barrier")
    a(f"s_branch {Latt}")

    a(f"{Lpf}:")
    PF = os.environ.get("K1_PF", "1") == "1"
    PFON = [PF]
    MPF = os.environ.get("K1_MPF", "1") == "1"
    a(f"s_load_dwordx2 s[24:25], s[0:1], {KA_WO}")
    a(f"s_load_dwordx2 s[26:27], s[0:1], {KA_DBG}")
    rows_load(51)
    a("v_min_u32 v14, 23, v1")
    a("v_lshrrev_b32 v15, 3, v14")
    a(f"v_mul_u32_u24 v15, {STG1}, v15")
    a("v_and_b32 v14, 7, v14")
    a("v_lshl_add_u32 v15, v14, 4, v15")
    for i in range(4): a(f"v_mov_b32 v{32+i}, 0x3f803f80")
    a("ds_write_b128 v15, v[32:35]")
    a("s_mul_i32 s43, s49, 36")
    a("s_add_u32 s43, s43, s50")
    a("v_min_u32 v14, 35, v1")
    a("v_add_u32 v14, s43, v14")
    a("v_max_i32 v14, 0, v14")
    a("v_lshlrev_b32 v2, 11, v14")
    HALF = os.environ.get("K1_HALF", "0") == "1"
    a(f"v_min_u32 v14, {11 if HALF else 23}, v1")
    a("v_mul_u32_u24 v15, 21846, v14")
    a("v_lshrrev_b32 v15, 16, v15")
    a("v_mul_u32_u24 v16, 3, v15")
    a("v_sub_u32 v16, v14, v16")
    a("s_lshl_b32 s43, s48, 3")
    if HALF:
        a("s_and_b32 s44, s2, 1")
        a("s_lshl_b32 s44, s44, 2")
        a("s_add_u32 s43, s43, s44")
    a("v_add_u32 v15, s43, v15")
    a("v_mul_u32_u24 v15, 6144, v15")
    a("v_lshl_add_u32 v3, v16, 11, v15")
    PD = int(os.environ.get("K1_PD", "4"))
    PF64 = os.environ.get("PF64", "0") == "1"
    vm = []
    def wait_for(tag):
        idx = max(i for i, t in enumerate(vm) if t == tag)
        a(f"s_waitcnt vmcnt({len(vm) - 1 - idx})")
    def l2pf(st):
        if not PFON[0] or st >= nst: return
        if os.environ.get("K1_NOX", "1") != "1":
            a(f"s_mov_b32 s43, {st*128}")
            a(f"buffer_load_dword v30, v2, s[8:11], s43 offen"); vm.append("pf")
        if PF64: a(f"buffer_load_dword v30, v2, s[8:11], s43 offen offset:64"); vm.append("pf")
        a(f"s_mov_b32 s43, {st*64*6144}")
        a(f"buffer_load_dword v31, v3, s[12:15], s43 offen"); vm.append("pf")
        if PF64: a(f"buffer_load_dword v31, v3, s[12:15], s43 offen offset:64"); vm.append("pf")
    a("s_waitcnt lgkmcnt(0)")
    srd(a, 52, 24, 2097152)
    srd(a, 56, 26, 256)
    a("v_lshlrev_b32 v14, 7, v1")
    a("s_lshl_b32 s43, s2, 13")
    a("v_add_u32 v4, s43, v14")
    Lz = a.label("Lz")
    a("s_or_b32 s43, s34, s35")
    a("s_cmp_lg_u32 s43, 0")
    a(f"s_cbranch_scc1 {Lz}")
    flag_srd(a, 84)
    a("v_mov_b32 v5, 0")
    a("buffer_store_dword v5, v14, s[84:87], 0 offen sc1")
    for i in range(4): a(f"v_mov_b32 v{36+i}, 0")
    a("v_lshlrev_b32 v5, 4, v1")
    a("s_movk_i32 s43, 0x2000")
    a("buffer_store_dwordx4 v[36:39], v5, s[84:87], s43 offen sc1")
    a("s_waitcnt vmcnt(0)")
    a(f"{Lz}:")
    vm.append("rows")
    WB = os.environ.get("K1_WB", "")
    def wblast():
        for i in range(5):
            a(f"v_add_u32 v14, {64*i}, v1")
            a("v_min_u32 v14, 311, v14")
            a("v_mul_u32_u24 v15, 2731, v14")
            a("v_lshrrev_b32 v15, 16, v15")
            a("v_mul_u32_u24 v16, 24, v15")
            a("v_sub_u32 v14, v14, v16")
            a("v_mul_u32_u24 v16, 21846, v14")
            a("v_lshrrev_b32 v16, 16, v16")
            a("v_mul_u32_u24 v17, 3, v16")
            a("v_sub_u32 v14, v14, v17")
            a("v_lshl_add_u32 v16, v15, 6, v16")
            a("s_lshl_b32 s43, s48, 3")
            a("s_add_u32 s43, s43, 192")
            a("v_add_u32 v16, s43, v16")
            a("v_mul_u32_u24 v16, 6144, v16")
            a("v_lshl_add_u32 v16, v14, 11, v16")
            a("buffer_load_dword v31, v16, s[12:15], 0 offen"); vm.append("pf")
    if WB == "pre": wblast()
    TLB = int(os.environ.get("K1_TLB", "0"))
    def tlbwarm():
        a(f"s_load_dwordx4 s[64:67], s[0:1], {KA_WG}")
        a(f"s_load_dwordx4 s[68:71], s[0:1], {KA_WD}")
        a(f"v_lshlrev_b32 v14, {TLB}, v1")
        a("s_waitcnt lgkmcnt(0)")
        for (b, n) in ((64, 7340032), (66, 7340032), (68, 7340032), (70, 4194304), (32, 30 << 20), (24, 2097152)):
            srd(a, 72, b, n)
            for q in range((n >> TLB) // 64 + 1):
                a(f"s_mov_b32 s43, {q*64 << TLB}")
                a("buffer_load_dword v31, v14, s[72:75], s43 offen"); vm.append("pf")
    a("s_barrier")
    if TLB: tlbwarm()
    if os.environ.get("ICW", "0") == "1":
        a("s_getpc_b64 s[64:65]")
        a("s_lshr_b32 s43, s2, 3")
        a("s_lshl_b32 s43, s43, 11")
        a("v_and_b32 v14, 15, v1")
        a("v_lshl_add_u32 v14, v14, 7, s43")
        a(f"v_min_u32 v14, {int(os.environ.get('ICW_MAX', '45000'))}, v14")
        a("global_load_dword v31, v14, s[64:65]"); vm.append("pf")
    if WB == "post": wblast()
    if WB: PFON[0] = False
    GS = int(os.environ.get("K1_GS", "10"))
    SS = int(os.environ.get("K1_SS", "7"))
    PFN = int(os.environ.get("K1_PFN", "4"))
    Lgd = a.label("Lgd")
    nxt = [3]
    for s in range(nst):
        if s == 2:
            wait_for("rows")
            rows_stats(); rows_local()
        if s == 3:
            a("v_lshlrev_b32 v5, 4, v1")
            a("v_and_b32 v5, 63, v5")
            a(f"v_add_u32 v6, {LST}, v5")
            a("ds_read_b128 v[112:115], v6")
            a("s_lshl_b32 s43, s63, 3")
            a("v_add_u32 v5, s43, v5")
            a("s_waitcnt lgkmcnt(0)")
            a("s_mov_b64 exec, 15")
            a(f"buffer_store_dwordx4 v[112:115], v5, s[20:23], 0 offen sc1"); vm.append("store")
            a("s_mov_b64 exec, -1")
        if s < SS - 2:
            for q in range(PFN):
                l2pf(nxt[0]); nxt[0] += 1
        if MPF and s == 15:
            if last:
                a(f"buffer_load_dword v30, v4, s[52:55], 0 offen"); vm.append("pf")
            else:
                n = pf_g2_w(a, KA_WO, 1024, [0, 1, 2, 3], 84, 29, 30); vm.extend(["pf"]*n)
                if cspre:
                    Lnj = a.label("Lnj")
                    cs_setup(a, Lnj, 84, 28)
                    for q in range(CS_NF): cs_issue(a, q, 84, 28)
                    a(f"{Lnj}:")
        if s == SS:
            a("s_waitcnt vmcnt(0)")
            a("s_lshl_b32 s43, s34, 4")
            a("s_add_u32 s43, s43, s35")
            a("v_mov_b32 v5, s43")
            a("v_mov_b32 v6, 1")
            a("s_mov_b64 exec, 1")
            a("buffer_store_byte v6, v5, s[56:59], 0 offen sc1"); vm.append("at")
            a("s_mov_b64 exec, -1")
        if s == GS:
            a("s_lshl_b32 s43, s34, 4")
            a("s_sub_u32 s44, s43, 4")
            a("s_max_i32 s44, s44, 0")
            a("v_lshl_add_u32 v5, v1, 2, s43")
            a("v_mov_b32 v6, s44")
            a("v_cmp_gt_u32 vcc, 4, v1")
            a("s_nop 1")
            a("v_cndmask_b32 v5, v6, v5, vcc")
            a("v_cmp_eq_u32 vcc, 5, v1")
            a("s_nop 1")
            a("v_cndmask_b32 v5, v5, 0, vcc")
            a("buffer_load_dword v6, v5, s[56:59], 0 offen sc1"); vm.append("poll")
        if s == GS + 2:
            Lpoll = a.label("Lpoll"); Lok = a.label("Lok"); Lfb = a.label("Lfb")
            a("s_mov_b32 s41, 200")
            a("s_mov_b32 s62, 0")
            wait_for("poll")
            a(f"{Lpoll}:")
            a("v_and_b32 v6, 0x01010101, v6")
            a("v_cmp_ne_u32 vcc, 0x01010101, v6")
            a("s_nop 4")
            a(f"s_cbranch_vccz {Lok}")
            a("buffer_load_dword v6, v5, s[56:59], 0 offen sc1")
            a("s_waitcnt vmcnt(0)")
            a("s_sub_u32 s41, s41, 1")
            a("s_cmp_lg_u32 s41, 0")
            a(f"s_cbranch_scc1 {Lpoll}")
            a("s_mov_b32 s41, 0")
            a(f"{Lfb}:")
            a("s_add_u32 s62, s50, s41")
            a("s_max_i32 s62, s62, 0")
            rows_load(62)
            a("s_waitcnt vmcnt(0)")
            rows_stats()
            a("s_lshl_b32 s43, s41, 3")
            a(f"s_add_u32 s43, s43, {RST}")
            a("v_mov_b32 v5, s43")
            a("ds_write_b128 v5, v[112:115]")
            a("s_add_u32 s41, s41, 2")
            a("s_cmp_lt_u32 s41, 144")
            a(f"s_cbranch_scc1 {Lfb}")
            a("s_mov_b32 s62, 1")
            Lz0 = a.label("Lz0")
            a("v_mov_b32 v5, 0")
            a("s_mov_b32 s41, 0x10000")
            a(f"{Lz0}:")
            a("buffer_load_ubyte v6, v5, s[56:59], 0 offen sc1")
            a("s_waitcnt vmcnt(0)")
            a("v_cmp_eq_u32 vcc, 0, v6")
            a("s_nop 4")
            a(f"s_cbranch_vccz {Lok}")
            a("s_sub_u32 s41, s41, 1")
            a("s_cmp_lg_u32 s41, 0")
            a(f"s_cbranch_scc1 {Lz0}")
            a(f"{Lok}:")
            for q in range(3):
                a(f"v_add_u32 v5, {64*q}, v1")
                a("v_min_u32 v5, 143, v5")
                a(f"v_lshlrev_b32 v{20+q}, 3, v5")
                a("v_add_u32 v5, s50, v5")
                a("v_max_i32 v5, 0, v5")
                a("v_lshlrev_b32 v5, 3, v5")
                a(f"buffer_load_dwordx2 v[{32+2*q}:{33+2*q}], v5, s[20:23], 0 offen sc1"); vm.append("gather")
        if s == GS + 4:
            wait_for("gather")
            a("s_cmp_eq_u32 s62, 1")
            a(f"s_cbranch_scc1 {Lgd}")
            for q in range(3):
                a(f"v_add_u32 v{20+q}, {RST}, v{20+q}")
                a(f"ds_write_b64 v{20+q}, v[{32+2*q}:{33+2*q}]")
            a(f"{Lgd}:")
            a("s_waitcnt lgkmcnt(0)")
        a("s_barrier")
    a("s_barrier")

    a(f"{Latt}:")
    a("s_barrier")
    if not PST: stamp(a, 3)
    a("s_and_b32 s43, s36, 1")
    a("s_lshr_b32 s44, s36, 1")
    a("s_and_b32 s44, s44, 1")
    a("s_lshr_b32 s45, s36, 2")
    a("v_lshlrev_b32 v14, 2, v13")
    a("v_sub_u32 v14, v12, v14")
    for r in range(4):
        a(f"v_subrev_u32 v15, {r}, v14")
        a(f"v_cmp_ge_u32 s[{52+2*r}:{53+2*r}], 7, v15")
        a(f"v_add_u32 v15, 16, v15")
        a(f"v_cmp_ge_u32 s[{84+2*r}:{85+2*r}], 7, v15")
    a("s_lshl_b32 s46, s45, 6")
    a("s_add_u32 s46, s46, s44")
    a("s_add_u32 s46, s46, 16")
    a("v_lshl_add_u32 v14, v12, 1, s46")
    a("s_lshl_b32 s47, s43, 6")
    a("v_lshl_add_u32 v15, v13, 4, s47")
    a(f"v_mad_u32_u24 v2, v14, s60, v15") if False else None
    a(f"v_mul_u32_u24 v2, {QP}, v14")
    a("v_add_u32 v2, v2, v15")
    a("v_subrev_u32 v16, 32, v14")
    a("v_max_i32 v16, 0, v16")
    a(f"v_mul_u32_u24 v3, {QP}, v16")
    a("v_add_u32 v3, v3, v15")
    a("v_lshrrev_b32 v16, 2, v12")
    a("v_lshl_add_u32 v16, v13, 2, v16")
    a("v_lshl_add_u32 v16, v16, 1, s46")
    a("v_and_b32 v17, 3, v1")
    a("v_lshl_add_u32 v17, v17, 3, s47")
    a(f"v_mul_u32_u24 v4, {QP}, v16")
    a("v_add_u32 v4, v4, v17")
    a("v_subrev_u32 v16, 32, v16")
    a("v_max_i32 v16, 0, v16")
    a(f"v_mul_u32_u24 v5, {QP}, v16")
    a("v_add_u32 v5, v5, v17")
    a("v_subrev_u32 v16, 16, v14")
    a("v_lshlrev_b32 v16, 11, v16")
    a("v_lshl_add_u32 v16, v13, 3, v16")
    a("v_add_u32 v6, s47, v16")
    a("v_add_u32 v7, 0x10000, v6")
    a("v_mov_b32 v8, 0xff800000")
    CS = (32 ** -0.5) * 1.4426950408889634
    a(f"s_mov_b32 s61, {fh(CS)}")
    a("s_or_b32 s62, s34, s45")
    U = 32*QP
    for u in range(2):
        B = 32 + 48*u
        uo = u*U
        a(f"ds_read_b128 v[{B}:{B+3}], v2 offset:{QKV + uo}")
        a(f"ds_read_b128 v[{B+4}:{B+7}], v2 offset:{QKV + uo + 128}")
        if u == 0: a(f"ds_read_b128 v[{B+8}:{B+11}], v3 offset:{QKV + 128}")
        else: a(f"ds_read_b128 v[{B+8}:{B+11}], v2 offset:{QKV + 128}")
        for dh in range(2):
            if u == 0: a(f"ds_read_b64_tr_b16 v[{B+12+4*dh}:{B+13+4*dh}], v5 offset:{QKV + 256 + dh*32}")
            else: a(f"ds_read_b64_tr_b16 v[{B+12+4*dh}:{B+13+4*dh}], v4 offset:{QKV + 256 + dh*32}")
            a(f"ds_read_b64_tr_b16 v[{B+14+4*dh}:{B+15+4*dh}], v4 offset:{QKV + uo + 256 + dh*32}")
    for u in range(2):
        B = 32 + 48*u
        a(f"s_waitcnt lgkmcnt({11 if u == 0 else 4})")
        a(f"v_mfma_f32_16x16x32_bf16 v[{B+20}:{B+23}], v[{B+8}:{B+11}], v[{B}:{B+3}], 0")
        a(f"v_mfma_f32_16x16x32_bf16 v[{B+24}:{B+27}], v[{B+4}:{B+7}], v[{B}:{B+3}], 0")
    a("s_nop 4")
    for u in range(2):
        B = 32 + 48*u
        S = B + 20
        if u == 0:
            a("s_cmp_lg_u32 s62, 0")
            for r in range(4): a(f"s_cselect_b64 s[{92}:{93}], s[{84+2*r}:{85+2*r}], 0\nv_cndmask_b32 v{S+r}, v8, v{S+r}, s[92:93]")
        else:
            for r in range(4): a(f"v_cndmask_b32 v{S+r}, v8, v{S+r}, s[{84+2*r}:{85+2*r}]")
        for r in range(4): a(f"v_cndmask_b32 v{S+4+r}, v8, v{S+4+r}, s[{52+2*r}:{53+2*r}]")
        M = B + 28; T = B + 29
        a(f"v_max3_f32 v{M}, v{S}, v{S+1}, v{S+2}")
        a(f"v_max3_f32 v{M}, v{M}, v{S+3}, v{S+4}")
        a(f"v_max3_f32 v{M}, v{M}, v{S+5}, v{S+6}")
        a(f"v_max_f32 v{M}, v{M}, v{S+7}")
        for sw in ("32", "16"):
            a(f"v_mov_b32 v{T}, v{M}")
            a("s_nop 1")
            a(f"v_permlane{sw}_swap_b32 v{M}, v{T}")
            a(f"v_max_f32 v{M}, v{M}, v{T}")
        a(f"v_mul_f32 v{M}, s61, v{M}")
        for r in range(8): a(f"v_fma_f32 v{S+r}, v{S+r}, s61, -v{M}")
        for r in range(8): a(f"v_exp_f32 v{S+r}, v{S+r}")
        a("s_nop 0")
        a(f"v_add_f32 v{M}, v{S}, v{S+1}")
        for r in range(2, 8): a(f"v_add_f32 v{M}, v{M}, v{S+r}")
        P = B + 32
        for q in range(4): a(f"v_cvt_pk_bf16_f32 v{P+q}, v{S+2*q}, v{S+2*q+1}")
        for sw in ("32", "16"):
            a(f"v_mov_b32 v{T}, v{M}")
            a("s_nop 1")
            a(f"v_permlane{sw}_swap_b32 v{M}, v{T}")
            a(f"v_add_f32 v{M}, v{M}, v{T}")
        a(f"v_rcp_f32 v{M}, v{M}")
        a("s_waitcnt lgkmcnt(0)")
        O = B + 36
        for dh in range(2):
            a(f"v_mfma_f32_16x16x32_bf16 v[{O+4*dh}:{O+4*dh+3}], v[{B+12+4*dh}:{B+15+4*dh}], v[{P}:{P+3}], 0")
    a("v_subrev_u32 v16, 16, v14")
    a("v_mul_u32_u24 v16, 144, v16")
    a("v_lshl_add_u32 v16, v13, 3, v16")
    a(f"s_add_u32 s43, s47, {OST}")
    a("v_add_u32 v6, s43, v16")
    a("v_lshrrev_b32 v16, 3, v1")
    a("s_lshl_b32 s43, s36, 4")
    a("v_add_u32 v16, s43, v16")
    a("v_and_b32 v17, 7, v1")
    a("v_mul_u32_u24 v7, 144, v16")
    a("v_lshl_add_u32 v7, v17, 4, v7")
    a(f"v_add_u32 v7, {OST}, v7")
    a(f"v_lshlrev_b32 v9, {7 if TM else 11}, v16")
    a("v_lshl_add_u32 v9, v17, 4, v9")
    for u in range(2):
        B = 32 + 48*u
        M = B + 28; O = B + 36
        for dh in range(2):
            for r in range(4): a(f"v_mul_f32 v{O+4*dh+r}, v{M}, v{O+4*dh+r}")
            a(f"v_cvt_pk_bf16_f32 v{O+4*dh}, v{O+4*dh}, v{O+4*dh+1}")
            a(f"v_cvt_pk_bf16_f32 v{O+4*dh+1}, v{O+4*dh+2}, v{O+4*dh+3}")
            a(f"ds_write_b64 v6, v[{O+4*dh}:{O+4*dh+1}] offset:{u*32*144 + dh*32}")
    a("s_waitcnt lgkmcnt(0)")
    a("s_barrier")
    for i in range(2):
        a(f"ds_read_b128 v[{32+4*i}:{32+4*i+3}], v7 offset:{i*8*144}")
    a(f"s_movk_i32 s43, {1024 if TM else 0x4000}")
    a("s_waitcnt lgkmcnt(1)")
    a(f"buffer_store_dwordx4 v[32:35], v9, s[16:19], 0 offen{SF}")
    a("s_waitcnt lgkmcnt(0)")
    a(f"buffer_store_dwordx4 v[36:39], v9, s[16:19], s43 offen{SF}")
    if STAMP:
        a("s_waitcnt vmcnt(0)")
        if not PST: stamp(a, 4)
        stamp_flush(a, 5, 36)
    if last:
        a(f"s_branch {Ld}")
    else:
        a("s_waitcnt vmcnt(0)")
        a("s_barrier")
        Ls = a.label("Lsig")
        a("s_cmp_lg_u32 s36, 0")
        a(f"s_cbranch_scc1 {Ls}")
        flag_srd(a, 56)
        flag_signal(a, 56, signal, 34)
        a(f"{Ls}:")
```

```python
import os
from common import *

NSX = int(os.environ.get("K3_NSX", "3"))
XSLOT = 32768
WIMG = 14336
WUP = WIMG + 16
WSLOT = 28704
WBASE = NSX * XSLOT
STATS = WBASE + 2*WSLOT
CSF = STATS + 2048
LDS_K3 = CSF + 1024
CSP = 0
STG = 20480

def early_w(a):
    a(f"s_load_dwordx4 s[72:75], s[0:1], {KA_WG}")
    a("s_bfe_u32 s43, s2, 0x20001")
    a("s_lshl_b32 s43, s43, 3")
    a("s_lshr_b32 s44, s2, 5")
    a("s_add_u32 s43, s43, s44")
    a("s_mul_i32 s43, s43, 224")
    a("s_waitcnt lgkmcnt(0)")
    srd(a, 64, 72, 1023*7168 + 224, add_lo=43)
    srd(a, 68, 74, 1023*7168 + 224, add_lo=43)
    Le = a.label("Lew")
    for rep in range(2):
        a(f"s_add_u32 s44, s36, {4*rep - 4}")
        if rep == 1:
            a("s_cmp_ge_u32 s44, 7")
            a(f"s_cbranch_scc1 {Le}")
        a("s_lshl_b32 s43, s44, 6")
        a("v_add_u32 v12, s43, v1")
        a("v_mul_u32_u24 v13, 4682, v12")
        a("v_lshrrev_b32 v13, 16, v13")
        a("v_mul_u32_u24 v14, 14, v13")
        a("v_sub_u32 v14, v12, v14")
        a("v_and_b32 v15, 0x13, v13")
        a("v_bfe_u32 v16, v13, 2, 1")
        a("v_bfe_u32 v17, v13, 3, 1")
        a("v_lshl_add_u32 v15, v16, 3, v15")
        a("v_lshl_add_u32 v15, v17, 2, v15")
        a("v_mul_u32_u24 v15, 7168, v15")
        a(f"v_lshl_add_u32 v{10+rep}, v14, 4, v15")
        a("s_lshl_b32 s44, s44, 10")
        a(f"s_add_u32 s44, s44, {WBASE}")
        for st in range(2):
            for (img, half) in ((0,0), (1,0), (0,1), (1,1)):
                a(f"s_add_u32 m0, s44, {st*WSLOT + img*WUP + half*7168}")
                a(f"s_mov_b32 s43, {(st*64 + half*32)*7168}")
                a(f"buffer_load_dwordx4 v{10+rep}, s[{64+4*img}:{67+4*img}], s43 offen lds")
    a(f"{Le}:")

EARLYW = os.environ.get("EARLYW", "1") == "1"
VGPR_K3 = 240
AG = os.environ.get("K3_AGPR", "0") == "1"
def phase_k3(a, Ld, wait=None, signal=None, last=True, cspre=False):
    strip = os.environ.get("K3_STRIP", "")
    nst = 16
    XF = " sc1" if wait else ""
    SF = " sc1" if signal is not None else ""
    stamp(a, 0)
    a(f"s_load_dwordx2 s[32:33], s[0:1], {KA_WS}")
    a(f"s_load_dwordx4 s[4:7], s[0:1], {KA_WG}")
    a("s_and_b32 s3, s2, 7")
    a("s_lshr_b32 s42, s2, 3")
    a("s_and_b32 s34, s3, 1")
    a("s_lshl_b32 s34, s34, 2")
    a("s_and_b32 s48, s42, 3")
    a("s_add_u32 s34, s34, s48")
    a("s_lshr_b32 s35, s3, 1")
    a("s_lshr_b32 s49, s42, 2")
    if os.environ.get("NSPREAD3", "0") == "1":
        a("s_lshl_b32 s43, s49, 2")
        a("s_add_u32 s35, s35, s43")
    else:
        a("s_lshl_b32 s35, s35, 3")
        a("s_add_u32 s35, s35, s49")
    a("v_lshrrev_b32 v12, 6, v0")
    a("v_and_b32 v1, 63, v0")
    a("v_readfirstlane_b32 s36, v12")
    a("s_mul_i32 s43, s35, 224")
    a(f"s_lshl_b32 s44, s34, {15 if TM else 19}")
    a("s_lshl_b32 s45, s34, 15")
    a("s_mul_i32 s46, s34, %d" % (256*7168))
    a("s_add_u32 s46, s46, s43")
    a("s_waitcnt lgkmcnt(0)")
    srd(a, 8, 32, (15*262144 + 32768) if TM else 256*2048, add_lo=44, add_imm=WS_H)
    srd(a, 12, 4, 1023*7168 + 224, add_lo=43)
    srd(a, 16, 6, 1023*7168 + 224, add_lo=43)
    srd(a, 20, 32, 256*128, add_lo=45, add_imm=WS_ST2)
    if TMH:
        a("s_lshl_b32 s46, s34, 15")
        srd(a, 24, 32, 55*262144 + 32768, add_lo=46, add_imm=WS_HH)
    else:
        srd(a, 24, 32, 255*7168 + 224, add_lo=46, add_imm=WS_HH)
    a("s_and_b32 s47, s36, 1")
    a("s_lshr_b32 s46, s36, 1")
    CSPRE = cspre
    if wait or signal is not None: flag_srd(a, 60)
    a("v_lshrrev_b32 v12, 3, v1")
    a("v_and_b32 v13, 7, v1")
    a("v_lshrrev_b32 v14, 1, v12")
    a("v_xor_b32 v14, v13, v14")
    a("v_lshlrev_b32 v14, 4, v14")
    XP = 7 if TM else 11
    XADV = 262144 if TM else 128
    a(f"v_lshl_add_u32 v14, v12, {XP}, v14")
    a(f"s_lshl_b32 s43, s36, {XP+5}")
    a("v_add_u32 v2, s43, v14")
    a("v_xor_b32 v3, 64, v2")
    a(f"v_add_u32 v3, {8 << XP}, v3")
    a(f"v_add_u32 v4, {16 << XP}, v2")
    a(f"v_add_u32 v5, {16 << XP}, v3")
    a("s_lshl_b32 s43, s36, 6")
    a("v_add_u32 v12, s43, v1")
    a("v_mul_u32_u24 v13, 4682, v12")
    a("v_lshrrev_b32 v13, 16, v13")
    a("v_mul_u32_u24 v14, 14, v13")
    a("v_sub_u32 v14, v12, v14")
    a("v_and_b32 v15, 0x13, v13")
    a("v_bfe_u32 v16, v13, 2, 1")
    a("v_bfe_u32 v17, v13, 3, 1")
    a("v_lshl_add_u32 v15, v16, 3, v15")
    a("v_lshl_add_u32 v15, v17, 2, v15")
    a("v_mul_u32_u24 v15, 7168, v15")
    a("v_lshl_add_u32 v6, v14, 4, v15")
    a("s_lshl_b32 s39, s36, 12")
    a("s_lshl_b32 s40, s36, 10")
    a(f"s_add_u32 s40, s40, {WBASE}")
    a("s_cmp_lt_u32 s36, 7")
    a("s_cselect_b32 s50, 1, 0")
    BASE = [0]
    a("s_mov_b32 s54, 0")
    a("s_mov_b32 s55, 0")
    def dmaX(s):
        slot = s % NSX
        g = []
        for i in range(4):
            g.append([f"s_add_u32 m0, s39, {slot*XSLOT + i*1024}", f"s_add_u32 s37, s54, {(s-BASE[0])*XADV}",
                      f"buffer_load_dwordx4 v{2+i}, s[8:11], s37 offen{XF} lds"])
        return g
    def dmaW(s):
        slot = s % 2
        L = a.label("Lnw")
        g = []
        for i, (img, half) in enumerate(((0,0), (1,0), (0,1), (1,1))):
            sr = "s[12:15]" if img == 0 else "s[16:19]"
            g.append([f"s_add_u32 m0, s40, {slot*WSLOT + img*WUP + half*7168}", f"s_add_u32 s38, s55, {((s-BASE[0])*64 + half*32)*7168}",
                      f"buffer_load_dwordx4 v6, {sr}, s38 offen lds"])
        return g
    def emitW(s):
        L = a.label("Lnw")
        a("s_cmp_eq_u32 s50, 0")
        a(f"s_cbranch_scc1 {L}")
        for g in dmaW(s):
            for i in g: a(i)
        a(f"{L}:")
    def emitX(s):
        for g in dmaX(s):
            for i in g: a(i)
    if wait:
        if not EARLYW:
            emitW(0); emitW(1)
    else:
        emitW(0); emitX(0)
    a("v_and_b32 v12, 15, v1")
    a("v_lshrrev_b32 v13, 4, v1")
    a("v_lshrrev_b32 v16, 1, v12")
    a("v_xor_b32 v15, v13, v16")
    a("v_lshlrev_b32 v15, 4, v15")
    a("v_lshl_add_u32 v15, v12, 7, v15")
    a("s_lshl_b32 s43, s46, 13")
    a("v_add_u32 v8, s43, v15")
    a("v_xor_b32 v9, 64, v8")
    a("v_add_u32 v10, 0x10000, v8")
    a("v_add_u32 v11, 0x10000, v9")
    a("v_lshrrev_b32 v15, 2, v12")
    a("v_and_b32 v16, 3, v1")
    a("v_lshrrev_b32 v17, 1, v13")
    a("v_lshl_add_u32 v15, v17, 4, v15")
    a("v_and_b32 v17, 1, v13")
    a("v_lshl_add_u32 v15, v17, 2, v15")
    a("v_mul_u32_u24 v15, 224, v15")
    a("v_lshrrev_b32 v17, 1, v16")
    a(f"v_mul_u32_u24 v17, {WUP}, v17")
    a("v_and_b32 v16, 1, v16")
    a("v_lshl_add_u32 v15, v16, 3, v15")
    a("s_mul_i32 s43, s47, 112")
    a(f"s_add_u32 s43, s43, {WBASE}")
    a("v_add3_u32 v7, v15, v17, s43")
    ACC = 128
    K3PD = int(os.environ.get("K3_PD", "6"))
    a("v_min_u32 v14, 5, v1")
    a("v_mul_u32_u24 v15, 21846, v14")
    a("v_lshrrev_b32 v15, 16, v15")
    a("v_mul_u32_u24 v16, 3, v15")
    a("v_sub_u32 v16, v14, v16")
    a("v_mul_u32_u24 v16, 108, v16")
    a("s_lshl_b32 s43, s48, 4")
    a("s_lshl_b32 s44, s36, 1")
    a("s_add_u32 s43, s43, s44")
    a("v_add_u32 v15, s43, v15")
    a("v_mul_u32_u24 v15, 7168, v15")
    a("v_add_u32 v30, v15, v16")
    def pf1(st):
        if os.environ.get("K3_NOPF"): st = 100
        a(f"s_add_u32 s38, s55, {(st-BASE[0])*64*7168}")
        a("buffer_load_dword v29, v30, s[12:15], s38 offen")
        a("buffer_load_dword v29, v30, s[16:19], s38 offen")
    LATE = bool(wait) and NSX == 3 and os.environ.get("K3_LATE", "1") == "1"
    a(f"v_lshlrev_b32 v28, {4 if LATE else 6}, v0")
    def stats_loads(force=False):
        if LATE and not force: return
        for i in range(4):
            if LATE:
                a(f"s_mov_b32 s43, {i*8192}")
                a(f"buffer_load_dwordx4 v[{12+4*i}:{12+4*i+3}], v28, s[20:23], s43 offen{XF}")
            else:
                a(f"buffer_load_dwordx4 v[{12+4*i}:{12+4*i+3}], v28, s[20:23], 0 offen offset:{16*i}{XF}")
    if wait:
        for st in range(2, K3PD-1): pf1(st)
        for i in range(112): a(f"v_accvgpr_write_b32 a{i}, 0" if AG else f"v_mov_b32 v{ACC+i}, 0")
        Lnp = a.label("Lnp")
        a("s_cmp_lg_u32 s36, 7")
        a(f"s_cbranch_scc1 {Lnp}")
        flag_poll(a, 60, 'h', 34, v=12)
        if CSPRE:
            a("s_lshr_b32 s43, s2, 1")
            a("s_cmp_ge_u32 s43, 112")
            a(f"s_cbranch_scc1 {Lnp}")
            a("s_mov_b32 s44, 0")
            flag_signal(a, 60, "cs", 44, v=12)
        a(f"{Lnp}:")
        a("s_barrier")
        if os.environ.get("STAMP3"): stamp(a, 3)
        emitX(0); stats_loads()
        for s in range(1, NSX): emitX(s)
        pf1(K3PD-1)
    else:
        stats_loads()
        for i in range(112): a(f"v_accvgpr_write_b32 a{i}, 0" if AG else f"v_mov_b32 v{ACC+i}, 0")
        for st in range(2, K3PD-1): pf1(st)
        emitW(1)
        for s in range(1, NSX): emitX(s)
        pf1(K3PD-1)
    NPF0 = 2*(K3PD-2)
    def ln2_stats_late():
        for q in range(4):
            b = 12 + 4*q
            a(f"v_add_f32 v{b}, v{b}, v{b+2}")
            a(f"v_add_f32 v{b+1}, v{b+1}, v{b+3}")
        for dpp in ("quad_perm:[1,0,3,2]", "quad_perm:[2,3,0,1]", "row_half_mirror"):
            for q in range(4):
                b = 12 + 4*q
                a(f"v_add_f32_dpp v{b}, v{b}, v{b} {dpp} row_mask:0xf bank_mask:0xf")
                a(f"v_add_f32_dpp v{b+1}, v{b+1}, v{b+1} {dpp} row_mask:0xf bank_mask:0xf")
        a("v_lshrrev_b32 v28, 3, v0")
        a("v_lshlrev_b32 v28, 3, v28")
        a(f"v_add_u32 v28, {STATS}, v28")
        for q in range(4):
            b = 12 + 4*q
            a(f"v_mul_f32 v{b}, 0x3a800000, v{b}")
            a(f"v_mul_f32 v{b+1}, 0x3a800000, v{b+1}")
            a(f"v_fma_f32 v{b+1}, -v{b}, v{b}, v{b+1}")
            a(f"v_max_f32 v{b+1}, 0, v{b+1}")
            a(f"v_add_f32 v{b+1}, 0x3727c5ac, v{b+1}")
            a(f"v_rsq_f32 v{b+1}, v{b+1}")
        a("s_nop 0")
        for q in range(4):
            b = 12 + 4*q
            a(f"ds_write_b64 v28, v[{b}:{b+1}] offset:{q*512}")
    def ln2_stats():
        a("v_add_f32 v12, v12, v14")
        a("v_add_f32 v13, v13, v15")
        for i in range(2, 8):
            a(f"v_add_f32 v12, v12, v{12+2*i}")
            a(f"v_add_f32 v13, v13, v{13+2*i}")
        a("s_nop 1")
        a("v_add_f32_dpp v14, v12, v12 quad_perm:[1,0,3,2] row_mask:0xf bank_mask:0xf")
        a("v_add_f32_dpp v15, v13, v13 quad_perm:[1,0,3,2] row_mask:0xf bank_mask:0xf")
        a("v_mul_f32 v14, 0x3a800000, v14")
        a("v_mul_f32 v15, 0x3a800000, v15")
        a("v_fma_f32 v15, -v14, v14, v15")
        a("v_max_f32 v15, 0, v15")
        a("v_add_f32 v15, 0x3727c5ac, v15")
        a("v_rsq_f32 v15, v15")
        a("v_lshrrev_b32 v12, 1, v0")
        a("v_lshlrev_b32 v12, 3, v12")
        a(f"v_add_u32 v12, {STATS}, v12")
        a(f"ds_write_b64 v12, v[14:15]")
    if CSPRE:
        pass
    else:
        for i in range(7): a(f"v_mov_b32 v{120+i}, 0")
        a("s_mov_b32 s51, 0x3f803f80")
    if wait:
        a(f"s_waitcnt vmcnt({(0 if LATE else 4) + 4*(NSX-1) + 2}) lgkmcnt(0)")
    else:
        L7 = a.label("L7"); L7e = a.label("L7e")
        a("s_cmp_eq_u32 s50, 0")
        a(f"s_cbranch_scc1 {L7}")
        a(f"s_waitcnt vmcnt({8 + 4*(NSX-1) + NPF0}) lgkmcnt(0)")
        a(f"s_branch {L7e}")
        a(f"{L7}:")
        a(f"s_waitcnt vmcnt({4 + 4*(NSX-1) + NPF0}) lgkmcnt(0)")
        a(f"{L7e}:")
    a("s_barrier")
    stamp(a, 1)
    SET = [32, 76]
    def reads(s, kk, base):
        xs = s % NSX
        xb = (8 + kk) if xs < 2 else (10 + kk)
        xo = (xs % 2) * XSLOT
        wo = (s % 2)*WSLOT + kk*7168
        def xr(mt): return f"ds_read_b128 v[{base+4*mt}:{base+4*mt+3}], v{xb} offset:{xo + mt*2048}"
        def wr(t, h): return f"ds_read_b64_tr_b16 v[{base+16+4*t+2*h}:{base+16+4*t+2*h+1}], v7 offset:{wo + h*1792 + t*16}"
        r = [xr(0), wr(0,0), wr(0,1), xr(1), xr(2), xr(3)]
        for t in range(1, 7): r += [wr(t,0), wr(t,1)]
        return r
    def mfmas(base):
        r = []
        for t in range(7):
            for mt in range(4):
                acc = ACC + (t*4+mt)*4
                if AG: r.append(f"v_mfma_f32_16x16x32_bf16 a[{acc-128}:{acc-125}], v[{base+16+4*t}:{base+16+4*t+3}], v[{base+4*mt}:{base+4*mt+3}], a[{acc-128}:{acc-125}]")
                else: r.append(f"v_mfma_f32_16x16x32_bf16 v[{acc}:{acc+3}], v[{base+16+4*t}:{base+16+4*t+3}], v[{base+4*mt}:{base+4*mt+3}], v[{acc}:{acc+3}]")
        return r
    def colsum(step, base):
        if "c" in strip or CSPRE: return
        L = a.label("Lcs")
        a(f"s_cmp_lg_u32 s46, {step & 3}")
        a(f"s_cbranch_scc1 {L}")
        for j in range(4):
            for t in range(7):
                a(f"v_dot2_f32_bf16 v{120+t}, v{base+16+4*t+j}, s51, v{120+t}")
        a(f"{L}:")
    def mpf():
        if os.environ.get("K3_MPF", "1") == "1":
            Lm = a.label("Lmpf")
            a("s_cmp_ge_u32 s36, 4")
            a(f"s_cbranch_scc1 {Lm}")
            a(f"s_load_dwordx2 s[28:29], s[0:1], {KA_WD}")
            a("v_lshlrev_b32 v31, 7, v1")
            a("s_mul_i32 s43, s2, 28672")
            a("s_lshl_b32 s44, s36, 13")
            a("s_add_u32 s43, s43, s44")
            a("v_add_u32 v31, s43, v31")
            a("s_waitcnt lgkmcnt(0)")
            srd(a, 56, 28, 7340032)
            a("buffer_load_dword v29, v31, s[56:59], 0 offen")
            a(f"{Lm}:")
        if not last and os.environ.get("X34", "0") == "1":
            Lm = a.label("Lmpf")
            a("s_cmp_lg_u32 s36, 7")
            a(f"s_cbranch_scc1 {Lm}")
            pf_g2_w(a, KA_WD, 3584, list(range(int(os.environ.get("X34_N", "2")))), 84, 31, 29)
            a(f"{Lm}:")
    def emit(seq):
        for i in seq:
            if "m" in strip and i.startswith("v_mfma"): continue
            if "r" in strip and i.startswith("ds_read"): continue
            if "d" in strip and i.startswith("buffer_load"): continue
            a(i)
    for i in reads(0, 0, SET[0]): a(i)
    TAIL0 = [0]
    def stage(s, nout, inloop):
        a("s_waitcnt lgkmcnt(0)")
        m = mfmas(SET[0]); rd = reads(s, 1, SET[1])
        emit(interleave(m, rd, 0, 1))
        colsum(2*s, SET[0])
        lastst = (s == nst-1)
        if lastst:
            if LATE:
                a("s_waitcnt vmcnt(0)")
                ln2_stats_late()
            a("s_waitcnt lgkmcnt(0)")
        else: a(f"s_waitcnt vmcnt({nout}) lgkmcnt(0)")
        a("s_barrier")
        if not LATE and s == (TAIL0[0] if CSPRE else nst-2): ln2_stats()
        m = mfmas(SET[1])
        rd = [] if lastst else reads(s+1, 0, SET[0])
        seq = interleave(m[:20], rd, 0, 1)
        if s + 2 < nst:
            emit(seq[:8]); seq = seq[8:]
            if "d" not in strip: emitW(s+2)
        xg = dmaX(s+NSX) if s + NSX < nst else []
        out = list(seq)
        for i, mm in enumerate(m[20:]):
            out.append(mm)
            if i % 2 == 0 and i//2 < len(xg): out.extend(xg[i//2])
        emit(out)
        if inloop: pf1(s + K3PD)
        if not last and not inloop and s == TAIL0[0]: mpf()
        colsum(2*s+1, SET[1])
        CG = nst-4 if LATE else nst-3
        if CSPRE and not inloop and s in (CG, CG+1):
            Lg = a.label("Lcsg")
            a("s_cmp_lg_u32 s36, 7")
            a(f"s_cbranch_scc1 {Lg}")
            if s == CG:
                a("s_mov_b32 s44, 0")
                flag_poll(a, 60, "cs", 44, v=12)
                a("v_min_u32 v12, 55, v1")
                a("v_cmp_le_u32 vcc, 28, v12")
                a("v_subrev_u32 v13, 28, v12")
                a("s_mul_i32 s43, s35, 448")
                a("v_cndmask_b32 v13, v12, v13, vcc")
                a("v_mov_b32 v14, 0")
                a("v_mov_b32 v15, 14336")
                a("v_cndmask_b32 v14, v14, v15, vcc")
                a("v_lshl_add_u32 v14, v13, 4, v14")
                a("v_add_u32 v14, s43, v14")
                a("v_lshrrev_b32 v15, 1, v13")
                a("v_and_b32 v13, 1, v13")
                a("v_lshlrev_b32 v15, 6, v15")
                a("v_lshl_add_u32 v15, v13, 4, v15")
                a("v_mov_b32 v13, 0")
                a("v_mov_b32 v12, 32")
                a("v_cndmask_b32 v13, v13, v12, vcc")
                a("v_add_u32 v15, v15, v13")
                a(f"v_add_u32 v31, {CSF}, v15")
                srd(a, 84, 32, 8*14336, add_imm=WS_CS)
                for q in range(4):
                    a(f"s_mov_b32 s43, {q*28672}")
                    a(f"buffer_load_dwordx4 v[{16+4*q if q < 3 else 120}:{19+4*q if q < 3 else 123}], v14, s[84:87], s43 offen sc1")
            elif s == CG+1:
                a("s_waitcnt vmcnt(0)")
                for r in range(4):
                    a(f"v_add_f32 v{16+r}, v{16+r}, v{20+r}")
                    a(f"v_add_f32 v{24+r}, v{24+r}, v{120+r}")
                for r in range(4): a(f"v_add_f32 v{16+r}, v{16+r}, v{24+r}")
                a("ds_write_b128 v31, v[16:19]")
                a("s_waitcnt lgkmcnt(0)")
            a(f"{Lg}:")
        if LATE and not inloop and s == nst-3: stats_loads(force=True)
    P = 2 if NSX == 2 else 6
    nloop = (nst - NSX) // P
    TAIL0[0] = nloop*P
    a(f"s_mov_b32 s41, {nloop}")
    Ll = a.label("Lk3")
    a(f"{Ll}:")
    for s in range(P): stage(s, 4*(NSX-2) + 2, True)
    a(f"s_add_u32 s54, s54, {P*XADV}")
    a(f"s_add_u32 s55, s55, {P*64*7168}")
    a("s_sub_u32 s41, s41, 1")
    a("s_cmp_lg_u32 s41, 0")
    a(f"s_cbranch_scc1 {Ll}")
    BASE[0] = nloop*P
    for s in range(nloop*P, nst):
        nout = (4 if (NSX == 3 and s+2 < nst) else 0) + (2 if s == nloop*P else 0)
        stage(s, nout, False)
    stamp(a, 2)
    if last: mpf()
    a("v_and_b32 v12, 15, v1")
    a("v_lshrrev_b32 v13, 4, v1")
    if not CSPRE:
        a("v_lshlrev_b32 v14, 6, v12")
        a("v_lshl_add_u32 v14, v13, 2, v14")
        a("s_mul_i32 s43, s47, 7168")
        a("s_lshl_b32 s44, s46, 4")
        a("s_add_u32 s43, s43, s44")
        a("v_add_u32 v14, s43, v14")
        for t in range(7):
            a(f"ds_write_b32 v14, v{120+t} offset:{CSP + t*1024}")
        a("s_waitcnt lgkmcnt(0)")
        a("s_barrier")
        Lc = a.label("Lc")
        a("v_cmp_gt_u32 vcc, 224, v0")
        a("s_and_saveexec_b64 s[52:53], vcc")
        a(f"s_cbranch_execz {Lc}")
        a("v_lshlrev_b32 v14, 6, v0")
        for i in range(4):
            a(f"ds_read_b128 v[{32+4*i}:{32+4*i+3}], v14 offset:{CSP + 16*i}")
        a("s_waitcnt lgkmcnt(0)")
        for i in range(1, 16):
            a(f"v_add_f32 v32, v32, v{32+i}")
        a("v_lshlrev_b32 v14, 2, v0")
        a(f"v_add_u32 v14, {CSF}, v14")
        a(f"ds_write_b32 v14, v32")
        a("s_waitcnt lgkmcnt(0)")
        a(f"{Lc}:")
        a("s_mov_b64 exec, s[52:53]")
        a("s_barrier")
    a("s_lshl_b32 s43, s46, 9")
    a(f"s_add_u32 s43, s43, {STATS}")
    a("v_lshl_add_u32 v15, v12, 3, s43")
    for mt in range(4):
        a(f"ds_read_b64 v[{16+2*mt}:{17+2*mt}], v15 offset:{mt*128}")
    a("s_mul_i32 s43, s47, 448")
    a(f"s_add_u32 s43, s43, {CSF}")
    a("v_lshl_add_u32 v14, v13, 4, s43")
    for t in range(7):
        a(f"ds_read_b128 v[{32+4*t}:{32+4*t+3}], v14 offset:{t*64}")
    a("s_waitcnt lgkmcnt(7)")
    C0 = -2.0*0.7978845608028654*1.4426950408889634
    C1 = C0*0.044715
    import struct
    def fh(x): return "0x%08x" % struct.unpack("<I", struct.pack("<f", x))[0]
    a("v_cmp_gt_u32 vcc, 32, v1")
    a("s_nop 1")
    for p in range(2):
        ra, rb = 17+4*p, 19+4*p
        a(f"v_cndmask_b32 v24, v{rb}, v{ra}, vcc")
        a("v_mul_f32 v25, v24, v24")
        a(f"v_mul_f32 v{64+3*p}, {fh(C0)}, v24")
        a(f"v_mul_f32 v26, {fh(C1)}, v24")
        a(f"v_mul_f32 v{65+3*p}, v26, v25")
        a(f"v_rcp_f32 v{66+3*p}, v25")
    WGS = TMH and os.environ.get("K3_WGS", "1") == "1"
    if WGS:
        RP = 240
        a("v_lshrrev_b32 v24, 5, v1")
        a("v_lshl_add_u32 v24, v24, 4, v12")
        a("s_lshl_b32 s43, s46, 6")
        a("v_add_u32 v24, s43, v24")
        a(f"v_mul_u32_u24 v24, {RP}, v24")
        a("v_and_b32 v25, 1, v13")
        a("v_lshl_add_u32 v24, v25, 3, v24")
        a("s_mul_i32 s43, s47, 112")
        a(f"s_add_u32 s43, s43, {STG}")
        a("v_add_u32 v27, s43, v24")
        a("s_mul_i32 s45, s35, 14")
        a("s_sub_u32 s52, 0, s45")
        a("s_and_b32 s52, s52, 7")
        CH = os.environ.get("K3_CH", "1") == "1"
        if CH:
            a("s_lshl_b32 s44, s46, 6")
            a("s_lshl_b32 s53, s47, 4")
            a("s_add_u32 s44, s44, s53")
            for i in range(4):
                if i < 2:
                    a("v_lshrrev_b32 v25, 3, v1")
                    a(f"v_add_u32 v25, {8*i}, v25")
                    a("v_and_b32 v26, 7, v1")
                    a("v_add_u32 v26, s52, v26")
                else:
                    a(f"v_add_u32 v24, {64*(i-2)}, v1")
                    a("v_min_u32 v24, 95, v24")
                    a("v_mul_u32_u24 v25, 10923, v24")
                    a("v_lshrrev_b32 v25, 16, v25")
                    a("v_mul_u32_u24 v26, 6, v25")
                    a("v_sub_u32 v26, v24, v26")
                    a("v_add_u32 v24, 8, v26")
                    a("v_cmp_gt_u32 vcc, s52, v26")
                    a("s_nop 1")
                    a("v_cndmask_b32 v26, v24, v26, vcc")
                a("v_add_u32 v25, s44, v25")
                a(f"v_mul_u32_u24 v24, {RP}, v25")
                a("v_lshl_add_u32 v24, v26, 4, v24")
                a(f"v_add_u32 v{80+i}, {STG}, v24")
                a("v_add_u32 v26, s45, v26")
                a("v_lshrrev_b32 v24, 3, v26")
                a("v_lshlrev_b32 v24, 18, v24")
                a("v_and_b32 v26, 7, v26")
                a("v_lshl_add_u32 v24, v26, 4, v24")
                a(f"v_lshl_add_u32 v{88+i}, v25, 7, v24")
        else:
            a("s_lshl_b32 s44, s36, 5")
            for i in range(7):
                if i < 4:
                    a("v_lshrrev_b32 v25, 3, v1")
                    a(f"v_add_u32 v25, {8*i}, v25")
                    a("v_and_b32 v26, 7, v1")
                    a("v_add_u32 v26, s52, v26")
                else:
                    a(f"v_add_u32 v24, {64*(i-4)}, v1")
                    a("v_mul_u32_u24 v25, 10923, v24")
                    a("v_lshrrev_b32 v25, 16, v25")
                    a("v_mul_u32_u24 v26, 6, v25")
                    a("v_sub_u32 v26, v24, v26")
                    a("v_add_u32 v24, 8, v26")
                    a("v_cmp_gt_u32 vcc, s52, v26")
                    a("s_nop 1")
                    a("v_cndmask_b32 v26, v24, v26, vcc")
                a("v_add_u32 v25, s44, v25")
                a(f"v_mul_u32_u24 v24, {RP}, v25")
                a("v_lshl_add_u32 v24, v26, 4, v24")
                a(f"v_add_u32 v{80+i}, {STG}, v24")
                a("v_add_u32 v26, s45, v26")
                a("v_lshrrev_b32 v24, 3, v26")
                a("v_lshlrev_b32 v24, 18, v24")
                a("v_and_b32 v26, 7, v26")
                a("v_lshl_add_u32 v24, v26, 4, v24")
                a(f"v_lshl_add_u32 v{88+i}, v25, 7, v24")
        a("s_waitcnt lgkmcnt(0)")
        T = 72
        for p in range(2):
            for t in range(7):
                A0 = ACC + (t*4 + 2*p)*4; A1 = A0 + 4
                m0, m1 = 16+4*p, 18+4*p
                k0, k1, irs = 64+3*p, 65+3*p, 66+3*p
                for r in range(4):
                    a(f"v_fma_f32 v{A0+r}, -v{m0}, v{32+4*t+r}, v{A0+r}")
                    a(f"v_fma_f32 v{A1+r}, -v{m1}, v{32+4*t+r}, v{A1+r}")
                a("s_nop 0")
                for r in range(4):
                    a(f"v_permlane32_swap_b32 v{A0+r}, v{A1+r}")
                for r in range(4): a(f"v_mul_f32 v{T+r}, v{A0+r}, v{A0+r}")
                for r in range(4): a(f"v_fma_f32 v{T+r}, v{T+r}, v{k1}, v{k0}")
                for r in range(4): a(f"v_mul_f32 v{T+r}, v{T+r}, v{A0+r}")
                for r in range(4): a(f"v_exp_f32 v{T+r}, v{T+r}")
                for r in range(4): a(f"v_mul_f32 v{A1+r}, v{A0+r}, v{A1+r}")
                for r in range(4): a(f"v_fma_f32 v{T+r}, v{T+r}, v{irs}, v{irs}")
                for r in range(4): a(f"v_rcp_f32 v{T+r}, v{T+r}")
                a("s_nop 0")
                for r in range(4): a(f"v_mul_f32 v{A1+r}, v{A1+r}, v{T+r}")
                a(f"v_cvt_pk_bf16_f32 v{A0}, v{A1}, v{A1+1}")
                a(f"v_cvt_pk_bf16_f32 v{A0+1}, v{A1+2}, v{A1+3}")
                a(f"ds_write_b64 v27, v[{A0}:{A0+1}] offset:{p*32*RP + t*16}")
                if CH and p == 1 and t == 0:
                    a("s_waitcnt lgkmcnt(1)")
                    for i in range(4):
                        a(f"buffer_store_dwordx4 v[{96+4*i}:{96+4*i+3}], v{88+i}, s[24:27], 0 offen{SF}")
                    a("s_mov_b64 exec, -1")
            if CH:
                a("s_waitcnt lgkmcnt(0)")
                a("s_barrier")
                for i in range(4):
                    a(f"ds_read_b128 v[{96+16*p+4*i}:{96+16*p+4*i+3}], v{80+i} offset:{p*32*RP}")
        if not os.environ.get("STAMP3"): stamp(a, 3)
        if CH:
            a("s_movk_i32 s43, 4096")
            for i in range(4):
                a(f"s_waitcnt lgkmcnt({3-i})")
                a(f"buffer_store_dwordx4 v[{112+4*i}:{112+4*i+3}], v{88+i}, s[24:27], s43 offen{SF}")
            a("s_mov_b64 exec, -1")
        else:
          a("s_waitcnt lgkmcnt(0)")
          a("s_barrier")
        for i in range(0 if CH else 7):
            a(f"ds_read_b128 v[{96+4*i}:{96+4*i+3}], v{80+i}")
        for i in range(0 if CH else 7):
            a(f"s_waitcnt lgkmcnt({6-i})")
            a(f"buffer_store_dwordx4 v[{96+4*i}:{96+4*i+3}], v{88+i}, s[24:27], 0 offen{SF}")
    else:
        a("v_lshrrev_b32 v24, 5, v1")
        a("v_lshl_add_u32 v24, v24, 4, v12")
        a("v_mul_u32_u24 v24, 144, v24")
        a("v_and_b32 v25, 1, v13")
        a("v_lshl_add_u32 v24, v25, 3, v24")
        a("s_mul_i32 s43, s36, 9216")
        a(f"s_add_u32 s43, s43, {STG}")
        a("v_add_u32 v27, s43, v24")
        a("s_waitcnt lgkmcnt(0)")
        T = 72
        if TMH:
            a("s_lshl_b32 s44, s46, 13")
            a("s_mul_i32 s45, s35, 14")
            a("s_mul_i32 s52, s47, 7")
            a("s_add_u32 s45, s45, s52")
        else:
            a("s_lshl_b32 s44, s46, 6")
            a("s_mul_i32 s44, s44, 7168")
            a("s_mul_i32 s45, s47, 112")
            a("s_add_u32 s44, s44, s45")
        for i in range(7):
            a(f"v_add_u32 v24, {64*i}, v1")
            a("v_mul_u32_u24 v25, 9363, v24")
            a("v_lshrrev_b32 v25, 16, v25")
            a("v_mul_u32_u24 v26, 7, v25")
            a("v_sub_u32 v26, v24, v26")
            a("v_mul_u32_u24 v24, 144, v25")
            a("v_lshl_add_u32 v24, v26, 4, v24")
            a(f"v_add_u32 v{80+i}, s43, v24")
            if TMH:
                a("v_add_u32 v26, s45, v26")
                a("v_lshrrev_b32 v24, 3, v26")
                a("v_lshlrev_b32 v24, 18, v24")
                a("v_and_b32 v26, 7, v26")
                a("v_lshl_add_u32 v24, v26, 4, v24")
                a(f"v_lshl_add_u32 v{88+i}, v25, 7, v24")
            else:
                a("v_mul_u32_u24 v24, 7168, v25")
                a(f"v_lshl_add_u32 v{88+i}, v26, 4, v24")
        def flush(lo, hi, dst, SF=SF):
            a("s_waitcnt lgkmcnt(0)")
            for i in range(lo, hi):
                a(f"ds_read_b128 v[{dst+4*(i-lo)}:{dst+4*(i-lo)+3}], v{80+i}")
            return [(f"s_waitcnt lgkmcnt({hi-1-i})" if False else None,
                     f"buffer_store_dwordx4 v[{dst+4*(i-lo)}:{dst+4*(i-lo)+3}], v{88+i}, s[24:27], s44 offen{SF}") for i in range(lo, hi)]
        pend = []
        for p in range(2):
            for t in range(7):
                A0 = ACC + (t*4 + 2*p)*4; A1 = A0 + 4
                if AG:
                    for r in range(8): a(f"v_accvgpr_read_b32 v{2+r}, a{A0-128+r}")
                    A0 = 2; A1 = 6
                m0, m1 = 16+4*p, 18+4*p
                k0, k1, irs = 64+3*p, 65+3*p, 66+3*p
                for r in range(4):
                    a(f"v_fma_f32 v{A0+r}, -v{m0}, v{32+4*t+r}, v{A0+r}")
                    a(f"v_fma_f32 v{A1+r}, -v{m1}, v{32+4*t+r}, v{A1+r}")
                a("s_nop 0")
                for r in range(4):
                    a(f"v_permlane32_swap_b32 v{A0+r}, v{A1+r}")
                for r in range(4): a(f"v_mul_f32 v{T+r}, v{A0+r}, v{A0+r}")
                for r in range(4): a(f"v_fma_f32 v{T+r}, v{T+r}, v{k1}, v{k0}")
                for r in range(4): a(f"v_mul_f32 v{T+r}, v{T+r}, v{A0+r}")
                for r in range(4): a(f"v_exp_f32 v{T+r}, v{T+r}")
                for r in range(4): a(f"v_mul_f32 v{A1+r}, v{A0+r}, v{A1+r}")
                for r in range(4): a(f"v_fma_f32 v{T+r}, v{T+r}, v{irs}, v{irs}")
                for r in range(4): a(f"v_rcp_f32 v{T+r}, v{T+r}")
                if pend and t == 0:
                    a("s_waitcnt lgkmcnt(0)")
                    for _, st in pend: a(st)
                    pend = []
                else:
                    a("s_nop 0")
                for r in range(4): a(f"v_mul_f32 v{A1+r}, v{A1+r}, v{T+r}")
                a(f"v_cvt_pk_bf16_f32 v{A0}, v{A1}, v{A1+1}")
                a(f"v_cvt_pk_bf16_f32 v{A0+1}, v{A1+2}, v{A1+3}")
                a(f"ds_write_b64 v27, v[{A0}:{A0+1}] offset:{p*32*144 + t*16}")
            if p == 0:
                pend = flush(0, 3, 96, SF=os.environ.get('K3_SF0', SF))
        if not os.environ.get("STAMP3"): stamp(a, 3)
        pend = flush(3, 7, 108)
        for i, (_, st) in enumerate(pend):
            a(f"s_waitcnt lgkmcnt({3-i})")
            a(st)
    if STAMP:
        a("s_waitcnt vmcnt(0)")
        stamp(a, 4)
        stamp_flush(a, 5, 36)
    if last:
        a(f"s_branch {Ld}")
    else:
        a("s_waitcnt vmcnt(0)")
        a("s_barrier")
        if signal is not None:
            Ls = a.label("Lsig")
            a("s_cmp_lg_u32 s36, 0")
            a(f"s_cbranch_scc1 {Ls}")
            if DYN: flag_tile_signal(a, 60, 34, 35)
            else: flag_signal(a, 60, signal, 34)
            a(f"{Ls}:")
```

```python
import os
from common import *

STG = 24576
NP = 3
VGPR_G2 = 176
SCH = 158720

def phase_g2(a, Ld, K, A_src, W_ka, R_src, O_src, stats, wait=None, signal=None, last=True, PF=None, tail_hook=None, NS=4, NOX=False, NOW=False, NP=3, csjob=False, A_tm=False, R_tm=False, O_tm=False, dyn=False):
    nst = K // 64
    if PF is None: PF = int(os.environ.get('G2_PF', '12'))
    UN = NS if NS % 2 == 0 else 2*NS
    pitchA = 128 if A_tm else K * 2
    XADV = 262144 if A_tm else 128
    XF = " sc1" if wait else ""
    SF = " sc1" if signal else ""
    Lend = a.label("Lg2end")
    stamp(a, 0)
    a(f"s_load_dwordx2 s[32:33], s[0:1], {KA_WS}")
    a(f"s_load_dwordx2 s[6:7], s[0:1], {W_ka}")
    def ptr(src, reg):
        if src[0] == 'ka':
            a(f"s_load_dwordx2 s[{reg}:{reg+1}], s[0:1], {src[1]}")
    ptr(A_src, 4); ptr(R_src, 28); ptr(O_src, 30)
    a("s_and_b32 s3, s2, 7")
    a("s_lshr_b32 s42, s2, 3")
    a("s_and_b32 s34, s3, 1")
    a("s_lshl_b32 s34, s34, 1")
    a("s_bfe_u32 s43, s3, 0x10001")
    a("s_add_u32 s34, s34, s43")
    a("s_lshl_b32 s34, s34, 2")
    a("s_and_b32 s48, s42, 3")
    a("s_add_u32 s34, s34, s48")
    a("s_lshr_b32 s35, s3, 2")
    a("s_lshr_b32 s49, s42, 2")
    a("s_lshl_b32 s35, s35, 3")
    a("s_add_u32 s35, s35, s49")
    a("v_lshrrev_b32 v12, 6, v0")
    a("v_and_b32 v1, 63, v0")
    a("v_readfirstlane_b32 s36, v12")
    a("s_waitcnt lgkmcnt(0)")
    def ptr2(src, reg):
        if src[0] == 'ws':
            a(f"s_add_u32 s{reg}, s32, {src[1]}")
            a(f"s_addc_u32 s{reg+1}, s33, 0")
    ptr2(A_src, 4); ptr2(R_src, 28); ptr2(O_src, 30)
    a(f"s_mul_i32 s43, s34, {128*pitchA}")
    srd(a, 8, 4, ((nst-1)*XADV + 16384) if A_tm else 128*pitchA, add_lo=43)
    a("s_lshl_b32 s43, s35, 7")
    srd(a, 12, 6, K*2048 - 1920, add_lo=43)
    if wait or signal: flag_srd(a, 56)
    Lprod = a.label("Lprod"); Lpf = a.label("Lpf")
    a("s_cmp_ge_u32 s36, 4")
    a(f"s_cbranch_scc1 {Lprod}")

    nbar = [0]
    def bar():
        a("s_barrier"); nbar[0] += 1
    a("s_lshl_b32 s44, s34, 18")
    a("s_add_u32 s43, s43, s44")
    a("s_lshl_b32 s44, s35, 18")
    a("s_lshl_b32 s45, s34, 14")
    a("s_add_u32 s44, s44, s45")
    srd(a, 16, 28, 16384 if R_tm else 128*2048 - 1920, add_lo=44 if R_tm else 43)
    srd(a, 20, 30, 16384 if O_tm else 128*2048 - 1920, add_lo=44 if O_tm else 43)
    if stats:
        a("s_lshl_b32 s43, s34, 14")
        a("s_lshl_b32 s44, s35, 3")
        a("s_add_u32 s43, s43, s44")
        srd(a, 24, 32, 128*128 - 120, add_lo=43, add_imm=WS_ST2)
    a("s_lshr_b32 s45, s36, 1")
    a("s_and_b32 s46, s36, 1")
    a("v_and_b32 v12, 15, v1")
    a("v_lshrrev_b32 v13, 4, v1")
    a("s_lshl_b32 s43, s46, 6")
    a("s_lshl_b32 s44, s45, 5")
    a("s_add_u32 s43, s43, s44")
    a("v_add_u32 v14, s43, v12")
    a(f"v_lshlrev_b32 v15, {7 if R_tm else 11}, v14")
    a("v_lshlrev_b32 v16, 3, v13")
    a("v_add_u32 v11, v15, v16")
    a(f"v_add_u32 v17, {2048 if R_tm else 0x8000}, v11")
    RES = 160
    a("v_lshlrev_b32 v18, 7, v14")
    nsg = (NS + 1)//2
    XB = 2; WB = 20
    assert 2*nsg <= 8 and 4*nsg <= 12
    a("s_lshl_b32 s43, s45, 2")
    a("v_add_u32 v15, s43, v13")
    a("v_lshrrev_b32 v16, 1, v12")
    a("v_xor_b32 v15, v15, v16")
    a("v_lshlrev_b32 v15, 4, v15")
    a("v_lshl_add_u32 v15, v12, 7, v15")
    a("s_lshl_b32 s43, s46, 13")
    a("s_lshl_b32 s44, s45, 12")
    a("s_add_u32 s43, s43, s44")
    a(f"v_add_u32 v{XB}, s43, v15")
    a(f"v_xor_b32 v{XB+1}, 0x1000, v{XB}")
    for sg in range(1, nsg):
        a(f"v_add_u32 v{XB+2*sg}, {sg*2*STG}, v{XB}")
        a(f"v_add_u32 v{XB+2*sg+1}, {sg*2*STG}, v{XB+1}")
    a("v_lshrrev_b32 v15, 2, v12")
    a("v_and_b32 v16, 3, v1")
    a("v_lshl_add_u32 v19, v13, 3, v15")
    a("s_lshl_b32 s43, s45, 5")
    a("v_add_u32 v19, s43, v19")
    a("v_lshlrev_b32 v19, 7, v19")
    a("v_and_b32 v15, 2, v15")
    a("v_and_b32 v10, 1, v13")
    a("v_lshl_add_u32 v15, v10, 2, v15")
    a("v_lshrrev_b32 v10, 1, v16")
    a("v_xor_b32 v15, v15, v10")
    a("v_lshl_add_u32 v19, v15, 4, v19")
    a("v_and_b32 v16, 1, v16")
    a("v_lshl_add_u32 v19, v16, 3, v19")
    a(f"v_add_u32 v{WB}, 16384, v19")
    for nt in range(1, 4):
        a(f"v_xor_b32 v{WB+nt}, {32*nt}, v{WB}")
    for sg in range(1, nsg):
        for nt in range(4):
            a(f"v_add_u32 v{WB+4*sg+nt}, {sg*2*STG}, v{WB+nt}")
    ACC = 96
    for i in range(64):
        a(f"v_mov_b32 v{ACC+i}, 0")
    SET = [32, 64]
    def reads(slot, base):
        sg, so = slot >> 1, (slot & 1)*STG
        def xr(mt): return f"ds_read_b128 v[{base+4*mt}:{base+4*mt+3}], v{XB+2*sg+(mt>>1)} offset:{so + (mt&1)*2048}"
        def wr(nt, h): return f"ds_read_b64_tr_b16 v[{base+16+4*nt+2*h}:{base+16+4*nt+2*h+1}], v{WB+4*sg+nt} offset:{so + h*512}"
        return [xr(0), wr(0,0), wr(0,1), wr(1,0), wr(1,1), xr(1), wr(2,0), wr(2,1), wr(3,0), wr(3,1), xr(2), xr(3)]
    def mfmas(base):
        r = []
        for mt in range(4):
            for nt in range(4):
                acc = ACC + (mt*4+nt)*4
                r.append(f"v_mfma_f32_16x16x32_bf16 v[{acc}:{acc+3}], v[{base+16+4*nt}:{base+16+4*nt+3}], v[{base+4*mt}:{base+4*mt+3}], v[{acc}:{acc+3}]")
        return r
    if wait: bar()
    if os.environ.get("STAMP3"): stamp(a, 3)
    bar()
    stamp(a, 1)
    for i in reads(0, SET[0]): a(i)
    a("v_lshrrev_b32 v11, 3, v1")
    a("s_lshl_b32 s43, s46, 6")
    a("s_lshl_b32 s44, s45, 5")
    a("s_add_u32 s43, s43, s44")
    a("v_add_u32 v11, s43, v11")
    a("v_and_b32 v17, 7, v1")
    a(f"v_lshlrev_b32 v10, {7 if R_tm else 11}, v11")
    a("v_lshl_add_u32 v10, v17, 4, v10")
    for i in range(4):
        a(f"s_mov_b32 s43, {i*8*(128 if R_tm else 2048)}")
        a(f"buffer_load_dwordx4 v[{RES+4*i}:{RES+4*i+3}], v10, s[16:19], s43 offen")
    def cstage(s, lastst=False):
        cur, nxt = SET[s & 1], SET[(s+1) & 1]
        a("s_waitcnt lgkmcnt(0)")
        a("s_barrier")
        m = mfmas(cur)
        rd = [] if lastst else reads((s+1) % NS, nxt)
        for i in range(16):
            a(m[i])
            if i < len(rd): a(rd[i])
    nfull = (nst - 1) // UN
    if nfull > 0:
        a(f"s_mov_b32 s41, {nfull}")
        Ll = a.label("Lcl")
        a(f"{Ll}:")
        for s in range(UN): cstage(s)
        a("s_sub_u32 s41, s41, 1")
        a("s_cmp_lg_u32 s41, 0")
        a(f"s_cbranch_scc1 {Ll}")
    for s in range(nfull*UN, nst):
        cstage(s, lastst=(s == nst-1))
    nbar[0] += nst
    stamp(a, 2)
    FP = 272
    a("v_and_b32 v12, 15, v1")
    a(f"v_mul_u32_u24 v12, {FP}, v12")
    a("v_lshrrev_b32 v13, 4, v1")
    a("v_lshl_add_u32 v12, v13, 4, v12")
    a(f"s_mul_i32 s43, s36, {64*FP}")
    a(f"s_mul_i32 s44, s45, {32*FP}")
    a("s_add_u32 s47, s43, s44")
    a("v_add_u32 v13, s47, v12")
    a(f"s_xor_b32 s44, s44, {32*FP}")
    a("s_add_u32 s47, s43, s44")
    a("v_add_u32 v14, s47, v12")
    for mt in range(4):
        for nt in range(4):
            acc = ACC + (mt*4+nt)*4
            a(f"ds_write_b128 v{13 if mt < 2 else 14}, v[{acc}:{acc+3}] offset:{(mt&1)*16*FP + nt*64}")
    a("v_and_b32 v15, 63, v11")
    a(f"v_mul_u32_u24 v15, {FP}, v15")
    a("v_lshl_add_u32 v15, v17, 5, v15")
    a(f"s_mul_i32 s43, s46, {64*FP}")
    a("v_add_u32 v15, s43, v15")
    a(f"v_lshlrev_b32 v13, {7 if O_tm else 11}, v11")
    a("v_lshl_add_u32 v13, v17, 4, v13")
    a("s_waitcnt lgkmcnt(0)")
    bar()
    for i in range(4):
        for half in range(2):
            for q in range(2):
                r = 32 + i*16 + half*8 + q*4
                a(f"ds_read_b128 v[{r}:{r+3}], v15 offset:{half*128*FP + i*8*FP + q*16}")
        if i == 2: a("s_waitcnt lgkmcnt(8)")
    a("s_waitcnt vmcnt(0)")
    PK = 96
    for i in range(4):
        b = 32 + i*16; rs = RES + 4*i
        a(f"s_waitcnt lgkmcnt({max(0, 12-4*i) if i else 12})" if False else f"s_waitcnt lgkmcnt({12-4*i})")
        for c in range(8): a(f"v_add_f32 v{b+c}, v{b+c}, v{b+8+c}")
        for d in range(4):
            a(f"v_lshlrev_b32 v{b+8+2*d}, 16, v{rs+d}")
            a(f"v_and_b32 v{b+9+2*d}, 0xffff0000, v{rs+d}")
        for c in range(8): a(f"v_add_f32 v{b+c}, v{b+c}, v{b+8+c}")
        for d in range(4): a(f"v_cvt_pk_bf16_f32 v{PK+4*i+d}, v{b+2*d}, v{b+2*d+1}")
        a(f"s_mov_b32 s43, {i*8*(128 if O_tm else 2048)}")
        a(f"buffer_store_dwordx4 v[{PK+4*i}:{PK+4*i+3}], v13, s[20:23], s43 offen{SF}")
    if stats:
        for i in range(4):
            s1, s2 = 112+2*i, 113+2*i
            for d in range(4):
                src = PK + 4*i + d
                a(f"v_lshlrev_b32 v120, 16, v{src}")
                a(f"v_and_b32 v121, 0xffff0000, v{src}")
                if d == 0:
                    a(f"v_add_f32 v{s1}, v120, v121")
                    a(f"v_mul_f32 v{s2}, v120, v120")
                else:
                    a(f"v_add_f32 v{s1}, v{s1}, v120")
                    a(f"v_add_f32 v{s1}, v{s1}, v121")
                    a(f"v_fmac_f32 v{s2}, v120, v120")
                a(f"v_fmac_f32 v{s2}, v121, v121")
        a("s_nop 1")
        for dpp in ("quad_perm:[1,0,3,2]", "quad_perm:[2,3,0,1]", "row_half_mirror"):
            for x in range(112, 120):
                a(f"v_add_f32_dpp v{x}, v{x}, v{x} {dpp} row_mask:0xf bank_mask:0xf")
        a("v_lshlrev_b32 v12, 7, v11")
        a("s_mov_b32 s44, 0x01010101")
        a("s_mov_b32 s45, 0x01010101")
        a("s_mov_b64 exec, s[44:45]")
        for i in range(4):
            a(f"buffer_store_dwordx2 v[{112+2*i}:{113+2*i}], v12, s[24:27], 0 offen offset:{i*1024}{SF}")
        a("s_mov_b64 exec, -1")
    if STAMP:
        if not os.environ.get("STAMP3"): stamp(a, 3)
        a("s_waitcnt vmcnt(0)")
        stamp(a, 4)
        stamp_flush(a, 5, 36, v0=90)
    if last:
        a(f"s_branch {Ld}")
    else:
        a("s_waitcnt vmcnt(0)")
        bar()
        if signal is not None:
            a("s_cmp_lg_u32 s36, 0")
            a(f"s_cbranch_scc1 {Lend}")
            flag_signal(a, 56, signal, 34)
        a(f"s_branch {Lend}")
    NB = nbar[0]

    a(f"{Lprod}:")
    a("s_sub_u32 s47, s36, 4")
    if NP == 3:
        a("s_cmp_eq_u32 s47, 3")
        a(f"s_cbranch_scc1 {Lpf}")
    a("v_lshrrev_b32 v12, 3, v1")
    a("v_and_b32 v13, 7, v1")
    a("v_and_b32 v14, 2, v12")
    a("v_xor_b32 v14, v13, v14")
    a("v_lshlrev_b32 v14, 4, v14")
    a("v_lshl_add_u32 v4, v12, 11, v14")
    a("v_xor_b32 v5, 64, v4")
    a("v_lshrrev_b32 v14, 1, v12")
    a("v_xor_b32 v14, v13, v14")
    a("v_lshlrev_b32 v14, 4, v14")
    a(f"s_mov_b32 s43, {pitchA}")
    a("v_mul_lo_u32 v15, v12, s43")
    a("v_add_u32 v2, v15, v14")
    a("v_xor_b32 v3, 64, v2")
    npi = 24 // NP
    items = [("w", j) for j in range(8)] + [("x", j) for j in range(16)]
    Lp = [a.label("Lp") for _ in range(NP)]
    for p in range(1, NP):
        a(f"s_cmp_eq_u32 s47, {p}")
        a(f"s_cbranch_scc1 {Lp[p]}")
    for p in range(NP):
        a(f"{Lp[p]}:")
        nb = 0
        mine = items[p::NP]
        for i, (t, j) in enumerate(mine):
            if t == "x": a(f"v_add_u32 v{16+i}, {8*j*pitchA}, v{2 + (j&1)}")
            else: a(f"v_add_u32 v{16+i}, {8*j*2048}, v{4 + (j&1)}")
        vm = []
        def one(i, slot, sx, sw_):
            t, j = mine[i]
            if t == "x":
                a(f"s_mov_b32 m0, {slot*STG + j*1024}")
                a("s_nop 0")
                a(f"buffer_load_dwordx4 v{16+i}, s[8:11], {sx} offen{XF} lds")
            else:
                a(f"s_mov_b32 m0, {slot*STG + 16384 + j*1024}")
                a("s_nop 0")
                a(f"buffer_load_dwordx4 v{16+i}, s[12:15], {sw_} offen lds")
        def dma(slot):
            for i in range(npi): one(i, slot, "s37", "s38")
            if dyn != 1:
                a(f"s_add_u32 s37, s37, {XADV}")
                a("s_add_u32 s38, s38, 131072")
        def sch_read(slot):
            a(f"ds_read_b32 v6, v7 offset:{slot*4}")
        def sch_use():
            a("s_waitcnt lgkmcnt(0)")
            a("v_readfirstlane_b32 s44, v6")
            a("s_lshl_b32 s37, s44, 18")
            a("s_lshl_b32 s38, s44, 17")
        def wait_stage(st):
            idx = max(i for i, t in enumerate(vm) if t == st)
            a(f"s_waitcnt vmcnt({len(vm)-1-idx})")
        if dyn == 1:
            assert A_tm and NP == 3
            a(f"v_mov_b32 v7, {SCH}")
            a("s_barrier"); nb += 1
            for st in range(NS):
                sch_read(st); sch_use()
                dma(st); vm += [st]*npi
        elif wait:
            for st in range(NS):
                a(f"s_mov_b32 s38, {st*131072}")
                for i in range(npi):
                    if mine[i][0] == "w": one(i, st, None, "s38"); vm.append(-1)
            if p == 0 and dyn != 2:
                flag_poll(a, 56, wait, 34, v=8)
                vm = []
            a("s_barrier"); nb += 1
            for st in range(NS):
                a(f"s_mov_b32 s37, {st*XADV}")
                for i in range(npi):
                    if mine[i][0] == "x": one(i, st, "s37", None); vm.append(st)
            a(f"s_mov_b32 s37, {NS*XADV}")
            a(f"s_mov_b32 s38, {NS*131072}")
        else:
            a("s_mov_b32 s37, 0")
            a("s_mov_b32 s38, 0")
            for st in range(NS):
                dma(st); vm += [st]*npi
        wait_stage(0)
        a("s_barrier"); nb += 1
        ndma = nst - NS
        def pstage_exact(s):
            if dyn == 1 and s < ndma: sch_read(NS + (s % NS))
            wait_stage(s+1)
            if dyn == 1 and s < ndma: sch_use()
            a("s_barrier")
            if s < ndma:
                dma(s % NS); vm.extend([s+NS]*npi)
        s = 0
        while s < min(NS, nst-1):
            pstage_exact(s); s += 1; nb += 1
        nl = max(0, (ndma - s)) // NS
        if nl > 0:
            a(f"s_mov_b32 s41, {nl}")
            Ll = a.label("Lpl")
            a(f"{Ll}:")
            for q in range(NS):
                if dyn == 1: sch_read(NS + ((s+q) % NS))
                a(f"s_waitcnt vmcnt({npi*(NS-2)})")
                if dyn == 1: sch_use()
                a("s_barrier")
                dma((s+q) % NS)
            a("s_sub_u32 s41, s41, 1")
            a("s_cmp_lg_u32 s41, 0")
            a(f"s_cbranch_scc1 {Ll}")
            for q in range(nl*NS): vm.extend([s+q+NS]*npi)
            s += nl*NS; nb += nl*NS
        while s < nst-1:
            pstage_exact(s); s += 1; nb += 1
        if last:
            a(f"s_branch {Ld}")
        else:
            if tail_hook: tail_hook(a)
            for q in range(NB - nb): a("s_barrier")
            a(f"s_branch {Lend}")
    a(f"{Lpf}:")
    nb = 0
    if dyn:
        a("s_lshr_b32 s43, s34, 1")
        a("s_add_u32 s43, s43, 64")
        a("s_lshl_b32 s43, s43, 7")
        a("v_and_b32 v8, 31, v1")
        a("v_lshl_add_u32 v8, v8, 2, s43")
        a("v_min_u32 v14, 55, v1")
        a("v_lshlrev_b32 v12, 2, v14")
        a("v_mul_u32_u24 v12, 9363, v12")
        a("v_lshrrev_b32 v12, 16, v12")
        a("v_lshlrev_b32 v13, 4, v14")
        a("v_add_u32 v13, 15, v13")
        a("v_mul_u32_u24 v13, 2341, v13")
        a("v_lshrrev_b32 v13, 16, v13")
        a(f"v_mov_b32 v7, {SCH}")
        a("s_mov_b64 s[62:63], 0")
        a("s_bfm_b64 s[60:61], 56, 0")
        def poll_issue():
            a("buffer_load_dword v9, v8, s[56:59], 0 offen sc1")
        def upd():
            a("s_waitcnt vmcnt(0)")
            a("v_cmp_ne_u32 vcc, 0, v9")
            a("s_nop 4")
            a("s_mov_b32 s52, vcc_lo")
            a("v_lshrrev_b32_e64 v10, v12, s52")
            a("v_lshrrev_b32_e64 v11, v13, s52")
            a("v_and_b32 v10, v10, v11")
            a("v_and_b32 v10, 1, v10")
            a("v_cmp_ne_u32 vcc, 0, v10")
            a("s_nop 4")
            a("s_and_b64 s[54:55], vcc, s[60:61]")
        def pick(entry):
            Lr = a.label("Lpk"); Lg = a.label("Lpg")
            a("s_mov_b32 s41, 0x10000")
            a(f"{Lr}:")
            if dyn == 2:
                a("s_andn2_b64 s[50:51], s[60:61], s[62:63]")
                a("s_ff1_i32_b64 s44, s[50:51]")
                a("s_bitcmp1_b64 s[54:55], s44")
            else:
                a("s_andn2_b64 s[50:51], s[54:55], s[62:63]")
            a(f"s_cbranch_scc1 {Lg}")
            poll_issue(); upd()
            a("s_mov_b32 s49, 0")
            a("s_sub_u32 s41, s41, 1")
            a("s_cmp_lg_u32 s41, 0")
            a(f"s_cbranch_scc1 {Lr}")
            a("s_andn2_b64 s[50:51], s[60:61], s[62:63]")
            a(f"{Lg}:")
            a("s_ff1_i32_b64 s44, s[50:51]")
            a("s_bitset1_b64 s[62:63], s44")
            a("v_mov_b32 v6, s44")
            a(f"ds_write_b32 v7, v6 offset:{entry*4}")
        poll_issue(); upd()
        a("s_mov_b32 s49, 0")
        if dyn == 2:
            a("v_and_b32 v14, 15, v1")
            a("v_lshrrev_b32 v15, 4, v1")
            a("s_lshl_b32 s43, s48, 4")
            a("v_add_u32 v14, s43, v14")
            a("v_lshl_add_u32 v14, v15, 6, v14")
            a("v_lshlrev_b32 v3, 11, v14")
        for k in range(NS): pick(k)
        if dyn == 1: pick(NS + 0)
        a("s_waitcnt lgkmcnt(0)")
        a("s_barrier")
        a("s_barrier")
        def step(entry):
            Ls = a.label("Lsk"); Li = a.label("Lsi")
            a("s_cmp_eq_u64 s[54:55], s[60:61]")
            a(f"s_cbranch_scc1 {Ls}")
            a("s_cmp_eq_u32 s49, 0")
            a(f"s_cbranch_scc1 {Li}")
            a("s_add_u32 s49, s49, 1")
            a("s_cmp_lt_u32 s49, 4")
            a(f"s_cbranch_scc1 {Ls}")
            upd()
            a(f"{Li}:")
            poll_issue()
            a("s_mov_b32 s49, 1")
            a(f"{Ls}:")
            pick(entry)
            a("s_waitcnt lgkmcnt(0)")
            a("s_barrier")
        njs = nst - NS - (1 if dyn == 1 else 0)
        nl = njs // NS
        a(f"s_mov_b32 s48, {nl}")
        Ll = a.label("Lsch")
        a(f"{Ll}:")
        for q in range(NS): step(NS + ((q+1) % NS))
        a("s_sub_u32 s48, s48, 1")
        a("s_cmp_lg_u32 s48, 0")
        a(f"s_cbranch_scc1 {Ll}")
        for j in range(nl*NS, njs): step(NS + ((j+1) % NS))
        assert last
        a(f"s_branch {Ld}")
    if csjob:
        Lno = a.label("Lnojob")
        cs_setup(a, Lno, 50+2, 4)
        a("s_lshl_b32 s47, s45, 1")
        a("s_add_u32 s47, s47, s44")
        a("s_mul_i32 s47, s47, 14336")
        a("s_lshl_b32 s48, s46, 9")
        a("s_add_u32 s47, s47, s48")
        a("v_lshl_add_u32 v5, v5, 5, s47")
        srd(a, 60, 32, 8*14336, add_imm=WS_CS)
        for i in range(8): a(f"v_mov_b32 v{16+i}, 0")
        NF = CS_NF
        pre1 = csjob == "pre"
        issued = [NF if pre1 else 0]; done = [0]; base = [NF if pre1 else 0]
        def issue():
            cs_issue(a, issued[0], 52, 4); issued[0] += 1
        def proc():
            i = done[0] % NF
            if done[0] >= base[0]: a(f"s_waitcnt vmcnt({issued[0] - done[0] - 1})")
            for d in range(4):
                a(f"v_lshlrev_b32 v{24+2*d}, 16, v{128+4*i+d}")
                a(f"v_and_b32 v{25+2*d}, 0xffff0000, v{128+4*i+d}")
            done[0] += 1
            if issued[0] < 64: issue()
            for d in range(8):
                a(f"v_add_f32 v{16+d}, v{16+d}, v{24+d}")
        if pre1:
            for i in range(NF): proc()
        else:
            for i in range(NF): issue()
        C1 = int(os.environ.get("CS_C1", "4")); C2 = int(os.environ.get("CS_C2", "12"))
        jb = 0
        for q in range(NB):
            st = q - (2 if wait else 1)
            if C1 <= st < C1 + 4:
                for _ in range(7): proc()
            if C2 <= st < C2 + 4:
                for _ in range(9):
                    if done[0] < 64: proc()
            if q == NB - 2:
                assert done[0] == 64
                for sw in ("16", "32"):
                    for d in range(8): a(f"v_mov_b32 v{24+d}, v{16+d}")
                    a("s_nop 0")
                    for d in range(8): a(f"v_permlane{sw}_swap_b32 v{16+d}, v{24+d}")
                    for d in range(8): a(f"v_add_f32 v{16+d}, v{16+d}, v{24+d}")
                a("s_mov_b64 exec, 0xffff")
                a("buffer_store_dwordx4 v[16:19], v5, s[60:63], 0 offen sc1")
                a("buffer_store_dwordx4 v[20:23], v5, s[60:63], 0 offen offset:16 sc1")
                a("s_mov_b64 exec, -1")
                a("s_nop 1")
                if tail_hook: tail_hook(a)
            a("s_barrier")
        a(f"s_branch {Lend}")
        a(f"{Lno}:")
    if PF:
        G = int(os.environ.get("G2_PG", "4"))
        a("v_and_b32 v12, 15, v1")
        a("v_lshrrev_b32 v13, 4, v1")
        a(f"v_min_u32 v13, {G-1}, v13")
        a("s_lshl_b32 s43, s49, 4")
        a("v_add_u32 v14, s43, v12")
        a(f"s_mov_b32 s43, {pitchA}")
        a("v_mul_lo_u32 v14, v14, s43")
        a(f"v_lshl_add_u32 v2, v13, {18 if A_tm else 7}, v14")
        a("s_lshl_b32 s43, s48, 4")
        a("v_add_u32 v14, s43, v12")
        a("v_lshl_add_u32 v14, v13, 6, v14")
        a("v_lshlrev_b32 v3, 11, v14")
        def pfx(g):
            if NOX: return
            a(f"s_mov_b32 s37, {g*XADV*G}")
            a(f"buffer_load_dword v8, v2, s[8:11], s37 offen{XF}")
        def pfw(g):
            if NOW: return
            a(f"s_mov_b32 s38, {g*131072*G}")
            a(f"buffer_load_dword v9, v3, s[12:15], s38 offen")
        ngrp = nst // G
        pre = min(ngrp, (PF + G - 1)//G)
        PFW = int(os.environ.get("G2_PFW", str(PF)))
        prew = min(ngrp, (PFW + G - 1)//G)
        start = NS // G
        if wait:
            for g in range(start, prew): pfw(g)
            a("s_barrier"); nb += 1
            a("s_barrier"); nb += 1
            for g in range(start, pre): pfx(g)
        else:
            for g in range(start, prew): pfw(g)
            for g in range(start, pre): pfx(g)
            a("s_barrier"); nb += 1
        for i in range(ngrp - min(pre, prew)):
            for q in range(G): a("s_barrier"); nb += 1
            if prew + i < ngrp: pfw(prew + i)
            if pre + i < ngrp: pfx(pre + i)
    if last:
        a(f"s_branch {Ld}")
    else:
        XS = int(os.environ.get("X23_AT", "6"))
        for q in range(NB - nb):
            if q == XS and os.environ.get("X23", "0") == "1":
                pf_k3_w(a, int(os.environ.get("X23_N", "4")), 64, 10, 12)
            if tail_hook and q == NB - nb - 3:
                a("s_waitcnt vmcnt(0)")
                tail_hook(a)
            a("s_barrier")
        if not tail_hook: a("s_waitcnt vmcnt(0)")
    a(f"{Lend}:")
```

```python
import sys, os
sys.path.insert(0, os.path.dirname(__file__))
from common import *
import pg2, k1, k3

HEADER = open("sequential_preLN__sliding_local_dilated__glu_gated_geglu__prompt.s.ref").read().split("; Override launch")[0]

CSJ = os.environ.get("CSJOB", "1") == "1"
CSPRE1 = os.environ.get("CSPRE1", "1") == "1"
DEF = {"K2": "4,1,1,3", "K4": "6,1,0,3"}
def cfg(k):
    ns, nox, now, np_ = [int(x) for x in os.environ.get(k + "_CFG", DEF[k]).split(",")]
    return dict(NS=ns, NOX=bool(nox), NOW=bool(now), NP=np_)

def build(spec, path):
    a = Asm()
    launches = []; descs = []
    groups = [g.split("+") for g in spec.split(",")]
    fused_any = any(len(g) > 1 for g in groups)
    for g in groups:
        name = "".join(g) + "_kernel"
        single = len(groups) == 1 and os.environ.get("SINGLE", "0") == "1"
        if single: name = "sequential_preLN__sliding_local_dilated__glu_gated_geglu__prompt_kernel"
        kernel_header(a, name)
        Ld = a.label("Ldone")
        a("s_cmp_ge_u32 s2, 256")
        a(f"s_cbranch_scc1 {Ld}")
        lds = 0; vg = 0
        for i, k in enumerate(g):
            last = (i == len(g)-1)
            prev = g[i-1] if i else None
            if k == "k1":
                k1.phase_k1(a, Ld, signal=None if last else 'o', last=last, cspre=(CSJ and CSPRE1 and len(g) == 4))
                lds = max(lds, k1.LDS_K1); vg = max(vg, k1.VGPR_K1)
            elif k == "k2":
                pg2.phase_g2(a, Ld, 1024, ('ws', WS_O), KA_WO, ('ka', KA_X), ('ws', WS_H), True,
                             wait='o' if prev else None, signal=None if last else 'h', last=last,
                             tail_hook=(k3.early_w if (not last and k3.EARLYW) else None), csjob=(('pre' if (CSPRE1 and len(g) == 4) else 'here') if (CSJ and not last) else False), A_tm=TM, O_tm=TM, **cfg('K2'))
                lds = max(lds, cfg('K2')['NS']*pg2.STG); vg = max(vg, pg2.VGPR_G2)
            elif k == "k3":
                k3.phase_k3(a, Ld, wait='h' if prev else None, signal=None if last else 'hh', last=last, cspre=bool(CSJ and prev))
                lds = max(lds, k3.LDS_K3); vg = max(vg, k3.VGPR_K3)
            elif k == "k4":
                pg2.phase_g2(a, Ld, 3584, ('ws', WS_HH), KA_WD, ('ws', WS_H), ('ka', KA_OUT), False,
                             wait='hh' if prev else None, last=last, R_tm=TM, A_tm=TMH, dyn=(DYN if prev else 0), **cfg('K4'))
                lds = max(lds, cfg('K4')['NS']*pg2.STG); vg = max(vg, pg2.VGPR_G2)
        a(f"{Ld}:")
        a("s_endpgm")
        descs.append(kernel_desc(name, vg, 100, 128 if (g == ["k3"] and k3.AG) else vg))
        if single: launches.append(f"; @launch grid=(256,1,1) block=(512,1,1) lds={lds}")
        else: launches.append(f"; @launch kernel={name} grid=(256,1,1) block=(512,1,1) lds={lds}")
    out = HEADER + "\n".join(launches) + "\n" + '.amdgcn_target "amdgcn-amd-amdhsa--gfx950"\n.text\n' + a.text()
    out += '.section .rodata,"a"\n' + "".join(descs)
    open(path, "w").write(out)

if __name__ == "__main__":
    build(sys.argv[1], sys.argv[2])
```

```python
import os, struct

def E(name, default):
    v = os.environ.get(name)
    if v is None: return default
    return type(default)(v) if not isinstance(default, bool) else v == "1"

WS_O   = 0
WS_H   = 4 << 20
WS_HH  = 8 << 20
WS_ST2 = 24 << 20
WS_ST1 = 25 << 20
WS_CS  = 26 << 20
WS_FLG = 27 << 20
WS_DBG = 28 << 20
WS_XCH = 32 << 20
HH_M = 56*16384

PX, PWQKV, PWO, PBX, PWG, PWU, PWD, POUT, PDBG, PWS = [64 + 2*i for i in range(10)]
SM, SN, SW, SMI, SNI = 34, 35, 36, 48, 49
BLK = 16384
LDS_TOTAL = 163840

def fh(x): return "0x%08x" % struct.unpack("<I", struct.pack("<f", x))[0]

class Asm:
    def __init__(self):
        self.L = []
        self.uid = 0
    def __call__(self, s):
        for line in s.split("\n"):
            line = line.strip()
            if line:
                self.L.append(line)
    def label(self, base="L"):
        self.uid += 1
        return f"{base}_{self.uid}"
    def text(self):
        return "\n".join(self.L) + "\n"

def kernel_header(a, name):
    a(f".globl {name}")
    a(".p2align 8")
    a(f".type {name},@function")
    a(f"{name}:")

def kernel_desc(name, vgpr, sgpr, accum):
    return f""".p2align 6
.amdhsa_kernel {name}
  .amdhsa_next_free_vgpr {vgpr}
  .amdhsa_next_free_sgpr {sgpr}
  .amdhsa_accum_offset {accum}
  .amdhsa_group_segment_fixed_size 0
  .amdhsa_kernarg_size 80
  .amdhsa_user_sgpr_count 2
  .amdhsa_user_sgpr_kernarg_segment_ptr 1
  .amdhsa_system_sgpr_workgroup_id_x 1
  .amdhsa_float_denorm_mode_32 3
  .amdhsa_float_denorm_mode_16_64 3
.end_amdhsa_kernel
"""

def srd(a, d, base, nbytes, add_lo=None, add_imm=0):
    if add_lo is not None:
        a(f"s_add_u32 s{d}, s{base}, s{add_lo}")
        a(f"s_addc_u32 s{d+1}, s{base+1}, 0")
        if add_imm:
            a(f"s_add_u32 s{d}, s{d}, {add_imm}")
            a(f"s_addc_u32 s{d+1}, s{d+1}, 0")
    elif add_imm:
        a(f"s_add_u32 s{d}, s{base}, {add_imm}")
        a(f"s_addc_u32 s{d+1}, s{base+1}, 0")
    else:
        a(f"s_mov_b32 s{d}, s{base}")
        a(f"s_mov_b32 s{d+1}, s{base+1}")
    a(f"s_mov_b32 s{d+2}, {nbytes}")
    a(f"s_mov_b32 s{d+3}, 0x20000")

def srd_m(a, d, ws_off, per_m, tmp=43):
    a(f"s_mul_i32 s{tmp}, s{SM}, {per_m}")
    srd(a, d, PWS, per_m, add_lo=tmp, add_imm=ws_off)

def interleave(main, fill, start=0, every=1):
    out = []; fi = 0
    for i, m in enumerate(main):
        out.append(m)
        if i >= start and (i - start) % every == 0 and fi < len(fill):
            out.append(fill[fi]); fi += 1
    out.extend(fill[fi:])
    return out

def snake(n_outer, n_inner):
    r = []
    for o in range(n_outer):
        for i in (range(n_inner) if o % 2 == 0 else reversed(range(n_inner))): r.append((o, i))
    return r

def mfma(acc, wa, xb, c=None):
    c = f"v[{acc}:{acc+3}]" if c is None else c
    return f"v_mfma_f32_16x16x32_bf16 v[{acc}:{acc+3}], v[{wa}:{wa+3}], v[{xb}:{xb+3}], {c}"

STAMP = E("STAMP", False)
def stamp(a, idx):
    if not STAMP: return
    a("s_memtime s[96:97]")
    a("s_memrealtime s[98:99]")
    a("s_waitcnt lgkmcnt(0)")
    a(f"v_writelane_b32 v254, s96, {idx}")
    a(f"v_writelane_b32 v255, s98, {idx}")
def stamp_init(a):
    if not STAMP: return
    a("v_mov_b32 v254, 0"); a("v_mov_b32 v255, 0")
def stamp_flush(a):
    if not STAMP: return
    a("s_waitcnt vmcnt(0)")
    stamp(a, 63)
    srd(a, 96, PWS, 256*8*512, add_imm=WS_DBG)
    a("s_lshl_b32 s43, s2, 3")
    a(f"s_add_u32 s43, s43, s{SW}")
    a("s_lshl_b32 s43, s43, 9")
    a("v_mbcnt_lo_u32_b32 v2, -1, 0")
    a("v_mbcnt_hi_u32_b32 v2, -1, v2")
    a("v_lshlrev_b32 v2, 2, v2")
    a("buffer_store_dword v254, v2, s[96:99], s43 offen")
    a("buffer_store_dword v255, v2, s[96:99], s43 offen offset:256")

FLG = {"o": (0, 16), "h": (16, 16), "hh1": (32, 16), "hh2": (48, 16), "cs": (64, 224)}
FLG_BYTES = (128 + 256)*128
SFLG = 56

def flag_srd(a, d):
    srd(a, d, PWS, FLG_BYTES, add_imm=WS_FLG)

def flag_addr(a, kind, v, per_m=True):
    base = FLG[kind][0]
    if per_m:
        a(f"s_add_u32 s43, s{SM}, {base}")
        a("s_lshl_b32 s43, s43, 7")
        a(f"v_mov_b32 v{v}, s43")
    else:
        a(f"v_mov_b32 v{v}, {base*128}")

def flag_signal(a, d, kind, v, per_m=True):
    flag_addr(a, kind, v, per_m)
    a(f"v_mov_b32 v{v+1}, 1")
    a("s_mov_b64 exec, 1")
    a(f"buffer_atomic_add v{v+1}, v{v}, s[{d}:{d+3}], 0 offen sc1")
    a("s_mov_b64 exec, -1")

def poll_issue(a, d, va, vd):
    a(f"buffer_load_dword v{vd}, v{va}, s[{d}:{d+3}], 0 offen sc1")

def poll_spin(a, d, va, vd, target, have=False, cnt=41):
    Lp = a.label("Lpoll"); Lo = a.label("Lpok"); Lc = a.label("Lpchk")
    a(f"s_mov_b32 s{cnt}, 0x40000")
    if have: a(f"s_branch {Lc}")
    a(f"{Lp}:")
    poll_issue(a, d, va, vd)
    a("s_waitcnt vmcnt(0)")
    a(f"{Lc}:")
    a(f"v_readfirstlane_b32 s42, v{vd}")
    a(f"s_cmp_eq_u32 s42, {target}")
    a(f"s_cbranch_scc1 {Lo}")
    a(f"s_sub_u32 s{cnt}, s{cnt}, 1")
    a(f"s_cmp_lg_u32 s{cnt}, 0")
    a(f"s_cbranch_scc1 {Lp}")
    a(f"{Lo}:")

CS_NF = 28
def cs_setup(a, Lno, sd, va):
    a("s_lshr_b32 s43, s2, 1")
    a("s_cmp_ge_u32 s43, 112")
    a(f"s_cbranch_scc1 {Lno}")
    a("s_and_b32 s44, s2, 1")
    a("s_cmp_eq_u32 s44, 0")
    a(f"s_cselect_b32 s{sd}, s{PWG}, s{PWU}")
    a(f"s_cselect_b32 s{sd+1}, s{PWG+1}, s{PWU+1}")
    a(f"s_mov_b32 s{sd+2}, 7340032")
    a(f"s_mov_b32 s{sd+3}, 0x20000")
    a("s_mul_i32 s45, s43, 2341")
    a("s_lshr_b32 s45, s45, 16")
    a("s_mul_i32 s46, s45, 28")
    a("s_sub_u32 s46, s43, s46")
    a(f"v_lshrrev_b32 v{va}, 4, v1")
    a("s_lshl_b32 s43, s45, 8")
    a(f"v_add_u32 v{va}, s43, v{va}")
    a(f"v_mul_u32_u24 v{va}, 7168, v{va}")
    a(f"v_and_b32 v{va+1}, 15, v1")
    a(f"v_lshl_add_u32 v{va}, v{va+1}, 4, v{va}")
    a("s_lshl_b32 s43, s46, 8")
    a(f"v_add_u32 v{va}, s43, v{va}")

def cs_issue(a, n, sd, va):
    i = n % CS_NF
    a(f"s_mov_b32 s43, {n*4*7168}")
    a(f"buffer_load_dwordx4 v[{128+4*i}:{128+4*i+3}], v{va}, s[{sd}:{sd+3}], s43 offen")

def wsrc128(a, vd, pitch, t0, t1):
    a(f"v_lshrrev_b32 v{t0}, 3, v1")
    a(f"v_and_b32 v{t1}, 6, v{t0}")
    a(f"v_and_b32 v{vd}, 7, v1")
    a(f"v_xor_b32 v{vd}, v{vd}, v{t1}")
    a(f"v_lshlrev_b32 v{vd}, 4, v{vd}")
    a(f"v_mul_u32_u24 v{t0}, {pitch}, v{t0}")
    a(f"v_add_u32 v{vd}, v{vd}, v{t0}")

def wsrc256(a, vd, pitch, t0, t1):
    a(f"v_lshrrev_b32 v{t0}, 4, v1")
    a(f"v_lshlrev_b32 v{t1}, 1, v{t0}")
    a(f"v_and_b32 v{vd}, 15, v1")
    a(f"v_xor_b32 v{vd}, v{vd}, v{t1}")
    a(f"v_lshlrev_b32 v{vd}, 4, v{vd}")
    a(f"v_mul_u32_u24 v{t0}, {pitch}, v{t0}")
    a(f"v_add_u32 v{vd}, v{vd}, v{t0}")

def wrd_base(a, vd, pitch, t0, t1):
    a(f"v_lshrrev_b32 v{t0}, 2, v1")
    if pitch == 128:
        a(f"v_bfe_u32 v{t1}, v{t0}, 1, 2")
    elif pitch == 256:
        a(f"v_and_b32 v{t1}, 7, v{t0}")
    else:
        a(f"v_bfe_u32 v{t1}, v{t0}, 2, 1")
    a(f"v_mul_u32_u24 v{t0}, {pitch}, v{t0}")
    a(f"v_lshl_add_u32 v{t0}, v{t1}, 5, v{t0}")
    a(f"v_and_b32 v{t1}, 3, v1")
    a(f"v_lshl_add_u32 v{vd}, v{t1}, 3, v{t0}")
```

```python
from common import *

NS = 3
XB_ = 18432
STG1 = XB_ + 3*8192
RST = 9*BLK
LST = RST + 1152
QKV = 0
QP = 400

def phase_k1(a, ea_hook=None):
    nst = 16
    a("s_lshl_b32 s43, s35, 7")
    a("s_lshl_b32 s50, s34, 7")
    a("s_sub_u32 s50, s50, 16")
    a("s_waitcnt lgkmcnt(0)")
    srd(a, 8, PX, 2048*2048)
    srd(a, 12, PWQKV, 1023*6144 + 4096 + 128, add_lo=43)
    Lprod = a.label("Lprod"); Lpf = a.label("Lpf"); Latt = a.label("Latt")
    a("v_and_b32 v12, 15, v1")
    a("v_lshrrev_b32 v13, 4, v1")
    a("s_cmp_ge_u32 s36, 4")
    a(f"s_cbranch_scc1 {Lprod}")

    a("v_lshrrev_b32 v16, 1, v12")
    a("v_xor_b32 v15, v13, v16")
    a("v_lshlrev_b32 v15, 4, v15")
    a("v_lshl_add_u32 v2, v12, 7, v15")
    a("v_xor_b32 v3, 64, v2")
    a(f"v_add_u32 v4, {2*STG1}, v2")
    a(f"v_add_u32 v5, {2*STG1}, v3")
    a("v_lshrrev_b32 v15, 2, v12")
    a("v_and_b32 v16, 3, v1")
    a("v_lshl_add_u32 v19, v13, 3, v15")
    a("v_lshlrev_b32 v19, 7, v19")
    a("v_and_b32 v15, 2, v15")
    a("v_and_b32 v17, 1, v13")
    a("v_lshl_add_u32 v15, v17, 2, v15")
    a("v_lshrrev_b32 v17, 1, v16")
    a("s_lshl_b32 s43, s36, 1")
    a("v_add_u32 v17, s43, v17")
    a("v_xor_b32 v15, v15, v17")
    a("v_lshl_add_u32 v19, v15, 4, v19")
    a("v_and_b32 v16, 1, v16")
    a("v_lshl_add_u32 v19, v16, 3, v19")
    for sl in range(3):
        a(f"v_add_u32 v{6+sl}, {XB_ + sl*STG1}, v19")
    ACC = 128
    def accreg(seg, mt):
        return ACC + 36*seg + 4*mt
    for i in range(108): a(f"v_mov_b32 v{ACC+i}, 0")
    SET = [32, 80]
    SN_ = E("SNAKE", True)
    def reads(s, kk, base):
        sl = s % NS
        xb = (2 + kk) if sl < 2 else (4 + kk)
        xo = (sl % 2)*STG1 if sl < 2 else 0
        def xr(mt): return f"ds_read_b128 v[{base+4*mt}:{base+4*mt+3}], v{xb} offset:{xo + mt*2048}"
        def wr(sg, h): return f"ds_read_b64_tr_b16 v[{base+36+4*sg+2*h}:{base+36+4*sg+2*h+1}], v{6+sl} offset:{sg*8192 + kk*4096 + h*512}"
        return [xr(0), wr(1,0), wr(1,1), wr(2,0), wr(2,1), wr(0,0), wr(0,1)] + [xr(m) for m in range(1, 9)]
    def mfmas(base):
        r = []
        for mt in range(9):
            for sg in ((1, 2, 0) if (mt % 2 == 0 or not SN_) else (0, 2, 1)):
                r.append(mfma(accreg(sg, mt), base+36+4*sg, base+4*mt))
        return r
    a("s_barrier")
    stamp(a, 1)
    for i in reads(0, 0, SET[0]): a(i)
    def cstage(s, last):
        a("s_waitcnt lgkmcnt(0)")
        for i in interleave(mfmas(SET[0]), reads(s, 1, SET[1]), 0, 1): a(i)
        a("s_waitcnt lgkmcnt(0)")
        a("s_barrier")
        for i in interleave(mfmas(SET[1]), [] if last else reads(s+1, 0, SET[0]), 0, 1): a(i)
    if E("STAMP_K1", False):
        for s in range(nst):
            cstage(s, s == nst-1); stamp(a, 40+s)
    else:
        nl = (nst-1)//NS
        a(f"s_mov_b32 s41, {nl}")
        Ll = a.label("Lcl")
        a(f"{Ll}:")
        for s in range(NS): cstage(s, False)
        a("s_sub_u32 s41, s41, 1")
        a("s_cmp_lg_u32 s41, 0")
        a(f"s_cbranch_scc1 {Ll}")
        for s in range(nl*NS, nst): cstage(s, s == nst-1)
    stamp(a, 2)
    a(f"v_lshlrev_b32 v14, 3, v12")
    a(f"v_add_u32 v14, {RST}, v14")
    a(f"v_mul_u32_u24 v15, {QP}, v12")
    a("v_lshl_add_u32 v15, v13, 3, v15")
    a("s_lshl_b32 s43, s36, 5")
    a("v_add_u32 v15, s43, v15")
    a("s_barrier")
    for mt in range(9):
        a(f"ds_read_b64 v[{32+2*mt}:{33+2*mt}], v14 offset:{mt*128}")
    for sg in range(3):
        for r in range(4):
            a(f"v_mov_b32_dpp v{52+4*sg+r}, v{accreg(sg,0)+r} row_newbcast:0 row_mask:0xf bank_mask:0xf")
    a("s_waitcnt lgkmcnt(0)")
    jobs = [(mt, sg) for mt in range(9) for sg in ((1, 2) if mt == 0 else (0, 1, 2))]
    def ln_a(mt, sg):
        acc = accreg(sg, mt); ms = 32+2*mt
        for r in (0, 2):
            a(f"v_pk_fma_f32 v[{acc+r}:{acc+r+1}], v[{ms}:{ms+1}], v[{52+4*sg+r}:{53+4*sg+r}], v[{acc+r}:{acc+r+1}] op_sel_hi:[0,1,1] neg_lo:[1,0,0] neg_hi:[1,0,0]")
    def ln_b(mt, sg):
        acc = accreg(sg, mt); ms = 32+2*mt
        for r in (0, 2):
            a(f"v_pk_mul_f32 v[{acc+r}:{acc+r+1}], v[{ms}:{ms+1}], v[{acc+r}:{acc+r+1}] op_sel:[1,0] op_sel_hi:[1,1]")
    def ln_c(mt, sg):
        acc = accreg(sg, mt)
        a(f"v_cvt_pk_bf16_f32 v{acc}, v{acc}, v{acc+1}")
        a(f"v_cvt_pk_bf16_f32 v{acc+1}, v{acc+2}, v{acc+3}")
        a(f"ds_write_b64 v15, v[{acc}:{acc+1}] offset:{QKV + mt*16*QP + sg*128}")
    for i in range(len(jobs) + 2):
        if i < len(jobs): ln_a(*jobs[i])
        if 0 <= i-1 < len(jobs): ln_b(*jobs[i-1])
        if 0 <= i-2 < len(jobs): ln_c(*jobs[i-2])
    a("s_waitcnt lgkmcnt(0)")
    a(f"s_branch {Latt}")

    a(f"{Lprod}:")
    a("s_sub_u32 s47, s36, 4")
    a("s_lshl_b32 s43, s34, 7")
    a("s_lshl_b32 s44, s35, 3")
    a("s_add_u32 s63, s43, s44")
    a("s_lshl_b32 s44, s47, 1")
    a("s_add_u32 s51, s63, s44")
    a("v_lshlrev_b32 v10, 4, v1")
    def rows_load(srow, dst=96):
        a(f"s_lshl_b32 s43, s{srow}, 11")
        for q in range(4):
            a(f"buffer_load_dwordx4 v[{dst+4*q}:{dst+4*q+3}], v10, s[8:11], s43 offen offset:{q*1024}")
    def rows_stats(srcb=96):
        for r in range(2):
            sa, qa = 116+4*r, 118+4*r
            for i in range(8):
                src = srcb + 8*r + i
                t = 124 + 2*(i & 1)
                a(f"v_lshlrev_b32 v{t}, 16, v{src}")
                a(f"v_and_b32 v{t+1}, 0xffff0000, v{src}")
                if i == 0:
                    a(f"v_mov_b32 v{sa}, v{t}"); a(f"v_mov_b32 v{sa+1}, v{t+1}")
                    a(f"v_mul_f32 v{qa}, v{t}, v{t}"); a(f"v_mul_f32 v{qa+1}, v{t+1}, v{t+1}")
                else:
                    a(f"v_add_f32 v{sa}, v{sa}, v{t}"); a(f"v_add_f32 v{sa+1}, v{sa+1}, v{t+1}")
                    a(f"v_fmac_f32 v{qa}, v{t}, v{t}"); a(f"v_fmac_f32 v{qa+1}, v{t+1}, v{t+1}")
        R = [116, 118, 120, 122]
        for x in R: a(f"v_add_f32 v{x}, v{x}, v{x+1}")
        a("s_nop 0")
        for sh in (8, 4, 2, 1):
            for x in R: a(f"v_add_f32_dpp v{x}, v{x}, v{x} row_ror:{sh} row_mask:0xf bank_mask:0xf")
        for sw in ("16", "32"):
            for x in R: a(f"v_mov_b32 v{x+1}, v{x}")
            a("s_nop 0")
            for x in R: a(f"v_permlane{sw}_swap_b32 v{x}, v{x+1}")
            for x in R: a(f"v_add_f32 v{x}, v{x}, v{x+1}")
        for r in range(2):
            sv, qv, o = 116+4*r, 118+4*r, 112+2*r
            a(f"v_mul_f32 v{o}, 0x3a800000, v{sv}")
            a(f"v_mul_f32 v{o+1}, 0x3a800000, v{qv}")
            a(f"v_fma_f32 v{o+1}, -v{o}, v{o}, v{o+1}")
            a(f"v_max_f32 v{o+1}, 0, v{o+1}")
            a(f"v_add_f32 v{o+1}, 0x3727c5ac, v{o+1}")
            a(f"v_rsq_f32 v{o+1}, v{o+1}")
        a("s_nop 0")
    def rows_local():
        a("s_lshl_b32 s43, s47, 4")
        a(f"s_add_u32 s43, s43, {LST}")
        a("v_mov_b32 v11, s43")
        a("ds_write_b128 v11, v[112:115]")
        a("s_waitcnt lgkmcnt(0)")
    a("s_cmp_eq_u32 s47, 3")
    a(f"s_cbranch_scc1 {Lpf}")
    a("v_lshrrev_b32 v14, 3, v1")
    a("v_and_b32 v15, 7, v1")
    a("v_and_b32 v16, 2, v14")
    a("v_xor_b32 v16, v15, v16")
    a("v_lshlrev_b32 v16, 4, v16")
    a("v_mul_u32_u24 v17, 6144, v14")
    a("s_lshl_b32 s43, s47, 11")
    a("v_add3_u32 v2, v17, v16, s43")
    a("v_xor_b32 v3, 64, v2")
    a("v_lshrrev_b32 v16, 1, v14")
    a("v_xor_b32 v16, v15, v16")
    a("v_lshlrev_b32 v16, 4, v16")
    a("s_lshl_b32 s43, s47, 3")
    a("s_add_u32 s43, s43, s50")
    a("v_add_u32 v17, s43, v14")
    a("s_and_b32 s44, s47, 1")
    a("s_lshl_b32 s44, s44, 6")
    for i in range(6):
        a(f"v_add_u32 v18, {24*i}, v17")
        a("v_max_i32 v18, 0, v18")
        a("v_lshl_add_u32 v18, v18, 11, v16")
        a("v_xor_b32 v18, s44, v18")
        if i & 1: a(f"v_xor_b32 v{4+i}, 64, v18")
        else: a(f"v_mov_b32 v{4+i}, v18")
    a("s_lshl_b32 s39, s47, 10")
    a("s_lshl_b32 s40, s47, 13")
    a(f"s_add_u32 s40, s40, {XB_}")
    a("s_mov_b32 s37, 0")
    a("s_mov_b32 s38, 0")
    a("s_bfm_b64 s[60:61], 56, 8")
    a("s_cmp_eq_u32 s47, 0")
    a("s_cselect_b64 s[60:61], s[60:61], -1")
    def dma(slot):
        for i in range(6):
            a(f"s_add_u32 m0, s39, {slot*STG1 + i*3072}")
            a("s_mov_b64 exec, s[60:61]" if i == 0 else "s_nop 0")
            a(f"buffer_load_dwordx4 v{4+i}, s[8:11], s37 offen lds")
            if i == 0: a("s_mov_b64 exec, -1")
        for j in range(8):
            a(f"s_add_u32 m0, s40, {slot*STG1 + j*1024}")
            a(f"s_add_u32 s43, s38, {8*j*6144}")
            a(f"buffer_load_dwordx4 v{2+(j&1)}, s[12:15], s43 offen lds")
        a("s_add_u32 s37, s37, 128")
        a(f"s_add_u32 s38, s38, {64*6144}")
    for sl in range(NS): dma(sl)
    rows_load(51)
    stamp(a, 1)
    a(f"s_waitcnt vmcnt({14*(NS-1) + 4})")
    a("s_barrier")
    def pstage(s, do_dma, vm, extra=None):
        if do_dma: dma((s+2) % NS)
        if extra: extra()
        if vm is not None: a(f"s_waitcnt vmcnt({vm})")
        a("s_barrier")
    pstage(0, False, 14 + 4)
    pstage(1, True, 14)
    def loc():
        rows_stats(); rows_local()
    pstage(2, True, 14, loc)
    pstage(3, True, 14)
    a(f"s_mov_b32 s41, 3")
    Lp = a.label("Lpl")
    a(f"{Lp}:")
    for s in range(4, 7): pstage(s, True, 14)
    a("s_sub_u32 s41, s41, 1")
    a("s_cmp_lg_u32 s41, 0")
    a(f"s_cbranch_scc1 {Lp}")
    pstage(13, True, 14)
    pstage(14, False, 0)
    pstage(15, False, None)
    a("s_barrier")
    if ea_hook: ea_hook(a)
    a(f"s_branch {Latt}")

    a(f"{Lpf}:")
    rows_load(51)
    vm = ["rows"]*4
    def wait_for(tag):
        idx = max(i for i, t in enumerate(vm) if t == tag)
        a(f"s_waitcnt vmcnt({len(vm) - 1 - idx})")
    a(f"v_min_u32 v14, 23, v1")
    a("v_mul_u32_u24 v15, 21846, v14")
    a("v_lshrrev_b32 v15, 16, v15")
    a("v_mul_u32_u24 v16, 3, v15")
    a("v_sub_u32 v16, v14, v16")
    a("s_lshl_b32 s43, s48, 3")
    a("v_add_u32 v15, s43, v15")
    a("v_mul_u32_u24 v15, 6144, v15")
    a("v_lshl_add_u32 v3, v16, 11, v15")
    def l2pf(st):
        if st >= nst: return
        a(f"s_mov_b32 s43, {st*64*6144}")
        a(f"buffer_load_dword v31, v3, s[12:15], s43 offen"); vm.append("pf")
    PF0 = E("K1_PF0", 0)
    nxt = [3]
    for q in range(PF0):
        l2pf(nxt[0]); nxt[0] += 1
    a("v_min_u32 v14, 23, v1")
    a("v_lshrrev_b32 v15, 3, v14")
    a(f"v_mul_u32_u24 v15, {STG1}, v15")
    a("v_and_b32 v14, 7, v14")
    a("v_lshl_add_u32 v15, v14, 4, v15")
    for i in range(4): a(f"v_mov_b32 v{32+i}, 0x3f803f80")
    a("ds_write_b128 v15, v[32:35]")
    srd(a, 20, PWS, 2048*8, add_imm=WS_ST1)
    srd(a, 56, PDBG, 256)
    flag_srd(a, 84)
    a("v_mov_b32 v5, 0")
    a("s_add_u32 s43, s2, 128")
    a("s_lshl_b32 s43, s43, 7")
    a("v_lshlrev_b32 v14, 2, v1")
    a("s_mov_b64 exec, 15")
    a("buffer_store_dword v5, v14, s[84:87], s43 offen sc1"); vm.append("z")
    a("s_mov_b64 exec, -1")
    a("v_lshlrev_b32 v14, 7, v1")
    a("s_or_b32 s43, s34, s35")
    a("s_cmp_eq_u32 s43, 0")
    a("s_cselect_b32 s43, 0, 0x7fffffff")
    a("s_cselect_b32 s44, 0x2000, s43")
    a("buffer_store_dword v5, v14, s[84:87], s43 offen sc1"); vm.append("z")
    a("s_mov_b64 exec, 0xffff")
    a("buffer_store_dword v5, v14, s[84:87], s44 offen sc1"); vm.append("z")
    a("s_mov_b64 exec, -1")
    a("s_waitcnt lgkmcnt(0)")
    a("s_barrier")
    GS = E("K1_GS", 8)
    SS = E("K1_SS", 6)
    PFN = E("K1_PFN", 4)
    CSB = E("K1_CSB", 12)
    def gather_issue():
        for q in range(3):
            a(f"v_add_u32 v5, {64*q}, v1")
            a("v_min_u32 v5, 143, v5")
            a(f"v_lshlrev_b32 v{20+q}, 3, v5")
            a("v_add_u32 v5, s50, v5")
            a("v_max_i32 v5, 0, v5")
            a("v_lshlrev_b32 v5, 3, v5")
            a(f"buffer_load_dwordx2 v[{32+2*q}:{33+2*q}], v5, s[20:23], 0 offen sc1")
    def gather_use():
        for q in range(3):
            a(f"v_add_u32 v{20+q}, {RST}, v{20+q}")
            a(f"ds_write_b64 v{20+q}, v[{32+2*q}:{33+2*q}]")
        a("s_waitcnt lgkmcnt(0)")
    def flags_check(Lok):
        a("v_and_b32 v6, 0x01010101, v6")
        a("v_cmp_ne_u32 vcc, 0x01010101, v6")
        a("s_nop 4")
        a(f"s_cbranch_vccz {Lok}")
    for s in range(nst):
        if s == 2:
            wait_for("rows")
            rows_stats(); rows_local()
        if s == 3:
            a("v_lshlrev_b32 v5, 4, v1")
            a("v_and_b32 v5, 63, v5")
            a(f"v_add_u32 v6, {LST}, v5")
            a("ds_read_b128 v[112:115], v6")
            a("s_lshl_b32 s43, s63, 3")
            a("v_add_u32 v5, s43, v5")
            a("s_waitcnt lgkmcnt(0)")
            a("s_mov_b64 exec, 15")
            a(f"buffer_store_dwordx4 v[112:115], v5, s[20:23], 0 offen sc1"); vm.append("store")
            a("s_mov_b64 exec, -1")
        for q in range(PFN):
            l2pf(nxt[0]); nxt[0] += 1
        if s == SS:
            wait_for("store")
            a("s_lshl_b32 s43, s34, 4")
            a("s_add_u32 s43, s43, s35")
            a("v_mov_b32 v5, s43")
            a("v_mov_b32 v6, 1")
            a("s_mov_b64 exec, 1")
            a("buffer_store_byte v6, v5, s[56:59], 0 offen sc1"); vm.append("at")
            a("s_mov_b64 exec, -1")
            stamp(a, 5)
        if s == GS:
            a("s_lshl_b32 s43, s34, 4")
            a("s_sub_u32 s44, s43, 4")
            a("s_max_i32 s44, s44, 0")
            a("v_lshl_add_u32 v4, v1, 2, s43")
            a("v_mov_b32 v6, s44")
            a("v_cmp_gt_u32 vcc, 4, v1")
            a("s_nop 1")
            a("v_cndmask_b32 v4, v6, v4, vcc")
            a("v_cmp_eq_u32 vcc, 5, v1")
            a("s_nop 1")
            a("v_cndmask_b32 v4, v4, 0, vcc")
            a("buffer_load_dword v6, v4, s[56:59], 0 offen sc1")
            a("s_mov_b32 s62, 0")
        if GS < s < nst - 1:
            L1 = a.label("Lst1"); Le = a.label("Lste"); Lok = a.label("Lok")
            a("s_cmp_eq_u32 s62, 2")
            a(f"s_cbranch_scc1 {Le}")
            a("s_waitcnt vmcnt(0)")
            a("s_cmp_eq_u32 s62, 1")
            a(f"s_cbranch_scc1 {L1}")
            flags_check(Lok)
            a("buffer_load_dword v6, v4, s[56:59], 0 offen sc1")
            a(f"s_branch {Le}")
            a(f"{Lok}:")
            gather_issue()
            a("s_mov_b32 s62, 1")
            a(f"s_branch {Le}")
            a(f"{L1}:")
            gather_use()
            a("s_mov_b32 s62, 2")
            stamp(a, 6)
            a(f"{Le}:")
        if s == nst - 1:
            L1 = a.label("Lst1"); Le = a.label("Lste"); Lok = a.label("Lok"); Lpoll = a.label("Lpoll"); Lfb = a.label("Lfb")
            a("s_cmp_eq_u32 s62, 2")
            a(f"s_cbranch_scc1 {Le}")
            a("s_waitcnt vmcnt(0)")
            a("s_cmp_eq_u32 s62, 1")
            a(f"s_cbranch_scc1 {L1}")
            a("s_mov_b32 s41, 200")
            a(f"{Lpoll}:")
            flags_check(Lok)
            a("buffer_load_dword v6, v4, s[56:59], 0 offen sc1")
            a("s_waitcnt vmcnt(0)")
            a("s_sub_u32 s41, s41, 1")
            a("s_cmp_lg_u32 s41, 0")
            a(f"s_cbranch_scc1 {Lpoll}")
            a("s_mov_b32 s41, 0")
            a(f"{Lfb}:")
            a("s_add_u32 s62, s50, s41")
            a("s_max_i32 s62, s62, 0")
            rows_load(62)
            a("s_waitcnt vmcnt(0)")
            rows_stats()
            a("s_lshl_b32 s43, s41, 3")
            a(f"s_add_u32 s43, s43, {RST}")
            a("v_mov_b32 v5, s43")
            a("ds_write_b128 v5, v[112:115]")
            a("s_add_u32 s41, s41, 2")
            a("s_cmp_lt_u32 s41, 144")
            a(f"s_cbranch_scc1 {Lfb}")
            Lz0 = a.label("Lz0")
            a("v_mov_b32 v5, 0")
            a("s_mov_b32 s41, 0x40000")
            a("s_waitcnt lgkmcnt(0)")
            a(f"{Lz0}:")
            a("buffer_load_ubyte v6, v5, s[56:59], 0 offen sc1")
            a("s_waitcnt vmcnt(0)")
            a("v_cmp_eq_u32 vcc, 0, v6")
            a("s_nop 4")
            a(f"s_cbranch_vccz {Le}")
            a("s_sub_u32 s41, s41, 1")
            a("s_cmp_lg_u32 s41, 0")
            a(f"s_cbranch_scc1 {Lz0}")
            a(f"s_branch {Le}")
            a(f"{Lok}:")
            gather_issue()
            a("s_waitcnt vmcnt(0)")
            a(f"{L1}:")
            gather_use()
            a(f"{Le}:")
        if s == CSB:
            a("s_lshl_b32 s43, s35, 7")
            srd(a, 52, PWO, 1024*2048 - 1920, add_lo=43)
            a("v_and_b32 v29, 7, v1")
            a("v_lshrrev_b32 v30, 3, v1")
            a("v_lshl_add_u32 v29, v30, 6, v29")
            a("s_lshl_b32 s43, s48, 3")
            a("v_add_u32 v29, s43, v29")
            a("v_lshlrev_b32 v29, 11, v29")
            a("s_mov_b32 s43, 1048576")
            a("buffer_load_dword v30, v29, s[52:55], 0 offen")
            a("buffer_load_dword v30, v29, s[52:55], s43 offen")
            Lnj = a.label("Lnj")
            cs_setup(a, Lnj, 84, 28)
            for q in range(CS_NF): cs_issue(a, q, 84, 28)
            a(f"{Lnj}:")
        a("s_barrier")
    a("s_barrier")
    if ea_hook: ea_hook(a)

    a(f"{Latt}:")
    a("s_and_b32 s43, s36, 1")
    a("s_lshr_b32 s44, s36, 1")
    a("s_and_b32 s44, s44, 1")
    a("s_lshr_b32 s45, s36, 2")
    a("v_lshlrev_b32 v14, 2, v13")
    a("v_sub_u32 v14, v12, v14")
    for r in range(4):
        a(f"v_subrev_u32 v15, {r}, v14")
        a(f"v_cmp_ge_u32 s[{52+2*r}:{53+2*r}], 7, v15")
        a(f"v_add_u32 v15, 16, v15")
        a(f"v_cmp_ge_u32 s[{84+2*r}:{85+2*r}], 7, v15")
    a("s_lshl_b32 s46, s45, 6")
    a("s_add_u32 s46, s46, s44")
    a("s_add_u32 s46, s46, 16")
    a("v_lshl_add_u32 v14, v12, 1, s46")
    a("s_lshl_b32 s47, s43, 6")
    a("v_lshl_add_u32 v15, v13, 4, s47")
    a(f"v_mul_u32_u24 v2, {QP}, v14")
    a("v_add_u32 v2, v2, v15")
    a("v_subrev_u32 v16, 32, v14")
    a("v_max_i32 v16, 0, v16")
    a(f"v_mul_u32_u24 v3, {QP}, v16")
    a("v_add_u32 v3, v3, v15")
    a("v_lshrrev_b32 v16, 2, v12")
    a("v_lshl_add_u32 v16, v13, 2, v16")
    a("v_lshl_add_u32 v16, v16, 1, s46")
    a("v_and_b32 v17, 3, v1")
    a("v_lshl_add_u32 v17, v17, 3, s47")
    a(f"v_mul_u32_u24 v4, {QP}, v16")
    a("v_add_u32 v4, v4, v17")
    a("v_subrev_u32 v16, 32, v16")
    a("v_max_i32 v16, 0, v16")
    a(f"v_mul_u32_u24 v5, {QP}, v16")
    a("v_add_u32 v5, v5, v17")
    srd_m(a, 16, WS_O, 262144, tmp=60)
    a("s_lshl_b32 s60, s35, 14")
    a("s_lshl_b32 s43, s43, 13")
    a("s_add_u32 s60, s60, s43")
    a("s_lshl_b32 s43, s45, 12")
    a("s_add_u32 s60, s60, s43")
    a("s_lshl_b32 s43, s44, 10")
    a("s_add_u32 s60, s60, s43")
    a("v_lshlrev_b32 v6, 4, v1")
    a("v_mov_b32 v8, 0xff800000")
    CS = (32 ** -0.5) * 1.4426950408889634
    a(f"s_mov_b32 s61, {fh(CS)}")
    a("s_or_b32 s62, s34, s45")
    a("s_barrier")
    stamp(a, 3)
    U = 32*QP
    for u in range(2):
        B = 32 + 48*u
        uo = u*U
        a(f"ds_read_b128 v[{B}:{B+3}], v2 offset:{QKV + uo}")
        a(f"ds_read_b128 v[{B+4}:{B+7}], v2 offset:{QKV + uo + 128}")
        if u == 0: a(f"ds_read_b128 v[{B+8}:{B+11}], v3 offset:{QKV + 128}")
        else: a(f"ds_read_b128 v[{B+8}:{B+11}], v2 offset:{QKV + 128}")
    for u in range(2):
        B = 32 + 48*u
        uo = u*U
        for dh in range(2):
            if u == 0: a(f"ds_read_b64_tr_b16 v[{B+12+4*dh}:{B+13+4*dh}], v5 offset:{QKV + 256 + dh*32}")
            else: a(f"ds_read_b64_tr_b16 v[{B+12+4*dh}:{B+13+4*dh}], v4 offset:{QKV + 256 + dh*32}")
            a(f"ds_read_b64_tr_b16 v[{B+14+4*dh}:{B+15+4*dh}], v4 offset:{QKV + uo + 256 + dh*32}")
    for u in range(2):
        B = 32 + 48*u
        a(f"s_waitcnt lgkmcnt({11 if u == 0 else 8})")
        a(f"v_mfma_f32_16x16x32_bf16 v[{B+20}:{B+23}], v[{B+8}:{B+11}], v[{B}:{B+3}], 0")
        a(f"v_mfma_f32_16x16x32_bf16 v[{B+24}:{B+27}], v[{B+4}:{B+7}], v[{B}:{B+3}], 0")
    a("s_cmp_lg_u32 s62, 0")
    for r in range(4): a(f"s_cselect_b64 s[{24+2*r}:{25+2*r}], s[{84+2*r}:{85+2*r}], 0")
    a("s_nop 1")
    def unit(u):
        B = 32 + 48*u
        S = B + 20; M = B + 28; T = B + 29; P = B + 32
        am = 24 if u == 0 else 84
        r_ = []
        for r in range(4): r_.append(f"v_cndmask_b32 v{S+r}, v8, v{S+r}, s[{am+2*r}:{am+1+2*r}]")
        for r in range(4): r_.append(f"v_cndmask_b32 v{S+4+r}, v8, v{S+4+r}, s[{52+2*r}:{53+2*r}]")
        r_.append(f"v_max3_f32 v{M}, v{S}, v{S+1}, v{S+2}")
        r_.append(f"v_max3_f32 v{T}, v{S+3}, v{S+4}, v{S+5}")
        r_.append(f"v_max3_f32 v{M}, v{M}, v{S+6}, v{S+7}")
        r_.append(f"v_max_f32 v{M}, v{M}, v{T}")
        for sw in ("32", "16"):
            r_.append(f"v_mov_b32 v{T}, v{M}")
            r_.append("s_nop 0")
            r_.append(f"v_permlane{sw}_swap_b32 v{M}, v{T}")
            r_.append(f"v_max_f32 v{M}, v{M}, v{T}")
        r_.append(f"v_mul_f32 v{M}, s61, v{M}")
        for r in range(8): r_.append(f"v_fma_f32 v{S+r}, v{S+r}, s61, -v{M}")
        for r in range(8): r_.append(f"v_exp_f32 v{S+r}, v{S+r}")
        for q in range(4): r_.append(f"v_cvt_pk_bf16_f32 v{P+q}, v{S+2*q}, v{S+2*q+1}")
        r_.append(f"v_add_f32 v{M}, v{S}, v{S+1}")
        r_.append(f"v_add_f32 v{T}, v{S+2}, v{S+3}")
        r_.append(f"v_add_f32 v{S+4}, v{S+4}, v{S+5}")
        r_.append(f"v_add_f32 v{S+6}, v{S+6}, v{S+7}")
        O = B + 36
        r_.append("s_waitcnt lgkmcnt(0)")
        for dh in range(2):
            r_.append(f"v_mfma_f32_16x16x32_bf16 v[{O+4*dh}:{O+4*dh+3}], v[{B+12+4*dh}:{B+15+4*dh}], v[{P}:{P+3}], 0")
        r_.append(f"v_add_f32 v{M}, v{M}, v{T}")
        r_.append(f"v_add_f32 v{S+4}, v{S+4}, v{S+6}")
        r_.append(f"v_add_f32 v{M}, v{M}, v{S+4}")
        for sw in ("32", "16"):
            r_.append(f"v_mov_b32 v{T}, v{M}")
            r_.append("s_nop 0")
            r_.append(f"v_permlane{sw}_swap_b32 v{M}, v{T}")
            r_.append(f"v_add_f32 v{M}, v{M}, v{T}")
        r_.append(f"v_rcp_f32 v{M}, v{M}")
        r_.append("s_nop 0")
        for q in range(4): r_.append(f"v_pk_mul_f32 v[{O+2*q}:{O+2*q+1}], v[{M}:{M+1}], v[{O+2*q}:{O+2*q+1}] op_sel_hi:[0,1]")
        for q in range(4): r_.append(f"v_cvt_pk_bf16_f32 v{P+q}, v{O+2*q}, v{O+2*q+1}")
        r_.append(f"buffer_store_dwordx4 v[{P}:{P+3}], v6, s[16:19], s60 offen offset:{u*2048} sc1")
        return r_
    u0, u1 = unit(0), unit(1)
    for x, y in zip(u0, u1):
        a(x); a(y)
    stamp(a, 4)
    flag_srd(a, 56)
    a("s_waitcnt vmcnt(0)")
    stamp(a, 7)
    a("s_barrier")
    Ls = a.label("Lsig")
    a("s_cmp_lg_u32 s36, 0")
    a(f"s_cbranch_scc1 {Ls}")
    flag_signal(a, 56, "o", 4)
    a(f"{Ls}:")
```

```python
from common import *

NS = 4
XS = [0, 3*BLK, 6*BLK, 9*BLK]
WB = 7*BLK
nst = 16

def early_w(a):
    a("s_lshl_b32 s43, s35, 7")
    srd(a, 24, PWO, 1024*2048 - 1920, add_lo=43)
    wsrc128(a, 14, 2048, 15, 16)
    a("s_sub_u32 s44, s36, 4")
    a("s_lshl_b32 s45, s44, 13")
    a("s_lshl_b32 s44, s44, 17")
    for j in range(8):
        a(f"s_add_u32 m0, s45, {WB + j*1024}")
        a(f"s_add_u32 s43, s44, {j*16384}")
        a("buffer_load_dwordx4 v14, s[24:27], s43 offen lds")

def phase_k2(a, w_hook):
    Lend = a.label("Lk2end"); Lprod = a.label("Lprod"); Lpf = a.label("Lpf")
    stamp(a, 8)
    a("s_cmp_ge_u32 s36, 4")
    a(f"s_cbranch_scc1 {Lprod}")
    NB = [0]
    def bar():
        a("s_barrier"); NB[0] += 1
    RES = 128; ACC = 96
    a("v_and_b32 v12, 15, v1")
    a("v_lshrrev_b32 v13, 4, v1")
    a("v_lshlrev_b32 v10, 12, v12")
    a("v_and_b32 v14, 1, v13")
    a("v_lshl_add_u32 v10, v14, 5, v10")
    a("v_lshrrev_b32 v14, 1, v13")
    a("v_lshl_add_u32 v10, v14, 4, v10")
    a("s_lshl_b32 s43, s34, 18")
    a("s_lshl_b32 s44, s36, 16")
    a("s_add_u32 s43, s43, s44")
    a("s_lshl_b32 s44, s35, 7")
    a("s_add_u32 s43, s43, s44")
    for t in range(2):
        for q in range(2):
            r = RES + (t*2+q)*4
            a(f"buffer_load_dwordx4 v[{r}:{r+3}], v10, s[8:11], s43 offen offset:{t*2048 + q*64}")
    srd_m(a, 20, WS_H, 262144)
    srd_m(a, 24, WS_ST2, 16384)
    a("v_lshlrev_b32 v11, 4, v1")
    a("s_lshl_b32 s43, s36, 11")
    a("v_add_u32 v2, s43, v11")
    a(f"v_add_u32 v3, {6*BLK}, v2")
    wrd_base(a, 4, 128, 14, 15)
    a(f"v_add_u32 v4, {WB}, v4")
    for nt in range(1, 4): a(f"v_xor_b32 v{4+nt}, {32*nt}, v4")
    a("s_lshl_b32 s44, s35, 14")
    a("s_add_u32 s60, s44, s43")
    a("v_lshrrev_b32 v14, 1, v13")
    a("v_lshlrev_b32 v14, 11, v14")
    a("v_lshl_add_u32 v14, v12, 3, v14")
    a("v_and_b32 v15, 1, v13")
    a("v_lshl_add_u32 v14, v15, 2, v14")
    a("s_lshl_b32 s43, s36, 12")
    a("s_lshl_b32 s44, s35, 7")
    a("s_add_u32 s43, s43, s44")
    a("v_add_u32 v9, s43, v14")
    a("s_mov_b32 s61, 0x3f803f80")
    def acc(t, nt): return ACC + (t*4+nt)*4
    a("s_waitcnt vmcnt(0)")
    for b in range(4):
        r = RES + 4*b
        a(f"v_permlane16_swap_b32 v{r}, v{r+2}")
        a(f"v_permlane16_swap_b32 v{r+1}, v{r+3}")
    for t in range(2):
        for q in range(2):
            r = RES + (t*2+q)*4
            for d in range(4):
                o = acc(t, 2*q + (d >> 1)) + 2*(d & 1)
                a(f"v_lshlrev_b32 v{o}, 16, v{r+d}")
                a(f"v_and_b32 v{o+1}, 0xffff0000, v{r+d}")
    SET = [[32, 56], [144, 168]]
    def reads(s, kk):
        base = SET[s & 1][kk]
        sl = s % NS
        def xr(t): return f"ds_read_b128 v[{base+4*t}:{base+4*t+3}], v{2 + (sl >> 1)} offset:{(sl & 1)*3*BLK + kk*8192 + t*1024}"
        def wr(nt, h): return f"ds_read_b64_tr_b16 v[{base+8+4*nt+2*h}:{base+8+4*nt+2*h+1}], v{4+nt} offset:{sl*8192 + kk*4096 + h*2048}"
        return [xr(0), wr(0,0), wr(0,1), wr(1,0), wr(1,1), wr(2,0), wr(2,1), wr(3,0), wr(3,1), xr(1)]
    def mfmas(base):
        return [mfma(acc(t, nt), base+8+4*nt, base+4*t) for (t, nt) in snake(2, 4)]
    bar()
    stamp(a, 9)
    bar()
    stamp(a, 10)
    for i in reads(0, 0) + reads(0, 1): a(i)
    def cstage(s, last):
        a("s_waitcnt lgkmcnt(0)")
        a("s_barrier")
        m = mfmas(SET[s & 1][0]) + mfmas(SET[s & 1][1])
        rd = [] if last else reads(s+1, 0) + reads(s+1, 1)
        k = 0
        for i in range(16):
            a(m[i])
            for q in range(2):
                if k < len(rd): a(rd[k]); k += 1
    a("s_mov_b32 s41, 3")
    Ll = a.label("Lcl")
    a(f"{Ll}:")
    for s in range(NS): cstage(s, False)
    a("s_sub_u32 s41, s41, 1")
    a("s_cmp_lg_u32 s41, 0")
    a(f"s_cbranch_scc1 {Ll}")
    for s in range(12, 16): cstage(s, s == 15)
    NB[0] += nst
    stamp(a, 11)
    a("s_nop 3")
    PK = 32
    for t in range(2):
        for q in ((0, 1) if t == 0 else (1, 0)):
            p = PK + (t*2+q)*4
            for d in range(4):
                o = acc(t, 2*q + (d >> 1)) + 2*(d & 1)
                a(f"v_cvt_pk_bf16_f32 v{p+d}, v{o}, v{o+1}")
            a(f"s_add_u32 s43, s60, {q*8192}")
            a(f"buffer_store_dwordx4 v[{p}:{p+3}], v11, s[20:23], s43 offen offset:{t*1024} sc1")
    for i in range(8): a(f"v_mov_b32 v{64+i}, 0")
    for d in range(8):
        for t in range(2):
            p = PK + t*8 + d
            a(f"v_dot2_f32_bf16 v{64+4*t+(d&1)}, v{p}, s61, v{64+4*t+(d&1)}")
            a(f"v_dot2_f32_bf16 v{66+4*t+(d&1)}, v{p}, v{p}, v{66+4*t+(d&1)}")
    a("s_nop 2")
    for x in (64, 66, 68, 70): a(f"v_add_f32 v{x}, v{x}, v{x+1}")
    a("s_nop 1")
    a("v_permlane32_swap_b32 v64, v68")
    a("v_permlane32_swap_b32 v66, v70")
    a("v_add_f32 v64, v64, v68")
    a("v_add_f32 v66, v66, v70")
    a("s_nop 1")
    a("v_permlane16_swap_b32 v64, v66")
    a("v_add_f32 v64, v64, v66")
    a("buffer_store_dword v64, v9, s[24:27], 0 offen sc1")
    stamp(a, 12)
    a("s_waitcnt vmcnt(0)")
    stamp(a, 13)
    bar()
    a("s_cmp_lg_u32 s36, 0")
    a(f"s_cbranch_scc1 {Lend}")
    flag_signal(a, 56, "h", 4)
    a(f"s_branch {Lend}")
    NB = NB[0]

    a(f"{Lprod}:")
    a("s_cmp_eq_u32 s36, 7")
    a(f"s_cbranch_scc1 {Lpf}")
    srd_m(a, 8, WS_O, 262144)
    a("s_lshl_b32 s43, s35, 7")
    srd(a, 12, PWO, 1024*2048 - 1920, add_lo=43)
    a("v_lshlrev_b32 v2, 4, v1")
    wsrc128(a, 3, 2048, 12, 13)
    HW = E("K2_HW", 8)
    items = [("x", j) for j in range(16)] + [("w", j) for j in range(8)]
    Lp = [a.label("Lp") for _ in range(3)]
    for p in range(1, 3):
        a(f"s_cmp_eq_u32 s36, {4+p}")
        a(f"s_cbranch_scc1 {Lp[p]}")
    for p in range(3):
        a(f"{Lp[p]}:")
        mine = items[p::3]
        for i, (t, j) in enumerate(mine):
            a(f"v_add_u32 v{16+i}, {j*1024 if t == 'x' else j*16384}, v{2 if t == 'x' else 3}")
        vm = []
        def one(i, slot):
            t, j = mine[i]
            a(f"s_mov_b32 m0, {(XS[slot] if t == 'x' else WB + slot*8192) + j*1024}")
            a("s_nop 0")
            if t == "x": a(f"buffer_load_dwordx4 v{16+i}, s[8:11], s37 offen sc1 lds")
            else: a(f"buffer_load_dwordx4 v{16+i}, s[12:15], s38 offen lds")
        def wait_stage(st):
            idx = max(i for i, t in enumerate(vm) if t == st)
            a(f"s_waitcnt vmcnt({len(vm)-1-idx})")
        if p == 0:
            flag_addr(a, "o", 8)
            poll_spin(a, 56, 8, 9, 16)
            stamp(a, 9)
        a("s_barrier")
        for st in range(NS):
            a(f"s_mov_b32 s37, {st*16384}")
            for i in range(8):
                if mine[i][0] == "x": one(i, st); vm.append(st)
        a(f"s_mov_b32 s37, {NS*16384}")
        a(f"s_mov_b32 s38, {NS*131072}")
        wait_stage(0)
        stamp(a, 10)
        a("s_barrier")
        for s in range(nst):
            if s+1 < nst: wait_stage(s+1)
            a("s_barrier")
            if s + NS < nst:
                for i in range(8): one(i, s % NS); vm.append(s+NS)
                a("s_add_u32 s37, s37, 16384")
                a("s_add_u32 s38, s38, 131072")
            if s == HW:
                n = w_hook(a); vm.extend(["h"]*n)
        a("s_barrier")
        a(f"s_branch {Lend}")

    a(f"{Lpf}:")
    MPF = E("K2_MPF", 6)
    def mpf():
        srd(a, 28, PWD, 7340032)
        a("v_lshlrev_b32 v6, 7, v1")
        a("s_mul_i32 s43, s2, 28672")
        a("v_add_u32 v6, s43, v6")
        for q in range(4):
            a(f"s_mov_b32 s43, {q*8192}")
            if q == 3: a("s_mov_b64 exec, 0xffffffff")
            a("buffer_load_dword v7, v6, s[28:31], s43 offen")
        a("s_mov_b64 exec, -1")
        return 4
    Lno = a.label("Lnojob")
    cs_setup(a, Lno, 52, 4)
    a("s_lshl_b32 s47, s45, 1")
    a("s_add_u32 s47, s47, s44")
    a("s_mul_i32 s47, s47, 14336")
    a("s_lshl_b32 s46, s46, 9")
    a("s_add_u32 s47, s47, s46")
    a("v_lshl_add_u32 v5, v5, 5, s47")
    srd(a, 60, PWS, 8*14336, add_imm=WS_CS)
    for i in range(8): a(f"v_mov_b32 v{16+i}, 0")
    vm = []
    issued = [CS_NF]; done = [0]
    def proc():
        i = done[0] % CS_NF
        if done[0] >= CS_NF:
            idx = vm.index(done[0])
            a(f"s_waitcnt vmcnt({len(vm)-1-idx})")
        for d in range(4):
            a(f"v_lshlrev_b32 v{24+2*d}, 16, v{128+4*i+d}")
            a(f"v_and_b32 v{25+2*d}, 0xffff0000, v{128+4*i+d}")
        done[0] += 1
        if issued[0] < 64:
            cs_issue(a, issued[0], 52, 4); vm.append(issued[0]); issued[0] += 1
        for d in range(4):
            a(f"v_pk_add_f32 v[{16+2*d}:{17+2*d}], v[{16+2*d}:{17+2*d}], v[{24+2*d}:{25+2*d}]")
    for i in range(CS_NF): proc()
    C1 = E("CS_C1", 2); C2 = E("CS_C2", 10)
    for q in range(NB):
        st = q - 2
        if C1 <= st < C1 + 4:
            for _ in range(7): proc()
        if C2 <= st < C2 + 2:
            for _ in range(4): proc()
        if st == C2 + 2:
            assert done[0] == 64
            for sw in ("16", "32"):
                for d in range(8): a(f"v_mov_b32 v{24+d}, v{16+d}")
                a("s_nop 0")
                for d in range(8): a(f"v_permlane{sw}_swap_b32 v{16+d}, v{24+d}")
                for d in range(8): a(f"v_add_f32 v{16+d}, v{16+d}, v{24+d}")
            a("s_mov_b64 exec, 0xffff")
            a("buffer_store_dwordx4 v[16:19], v5, s[60:63], 0 offen sc1"); vm.append("st")
            a("buffer_store_dwordx4 v[20:23], v5, s[60:63], 0 offen offset:16 sc1"); vm.append("st")
            a("s_mov_b64 exec, -1")
        if st == C2 + 5:
            idx = max(i for i, t in enumerate(vm) if t == "st")
            a(f"s_waitcnt vmcnt({len(vm)-1-idx})")
            flag_signal(a, 56, "cs", 8, per_m=False); vm.append("sig")
            stamp(a, 12)
        a("s_barrier")
        if st == MPF: vm.extend(["m"]*mpf())
        if st == HW: vm.extend(["h"]*w_hook(a))
    a(f"s_branch {Lend}")
    a(f"{Lno}:")
    for q in range(NB):
        a("s_barrier")
        if q - 2 == MPF: mpf()
        if q - 2 == HW: w_hook(a)
    a(f"{Lend}:")
```

```python
from common import *
import k4

SLOT = 3*BLK
STATS = 9*BLK
CSF = STATS + 1024
C0 = -2.0*0.7978845608028654*1.4426950408889634
C1 = C0*0.044715

def early_w(a):
    a("s_cmp_lt_u32 s36, 6")
    a(f"s_cselect_b32 s88, s{PWG}, s{PWU}")
    a(f"s_cselect_b32 s89, s{PWG+1}, s{PWU+1}")
    a("s_lshl_b32 s43, s35, 8")
    a("s_add_u32 s88, s88, s43")
    a("s_addc_u32 s89, s89, 0")
    a(f"s_mov_b32 s90, {1023*7168 + 256}")
    a("s_mov_b32 s91, 0x20000")
    wsrc256(a, 10, 7168, 12, 13)
    a("v_xor_b32 v11, 128, v10")
    a(f"v_add_u32 v11, {4*7168}, v11")
    a("s_and_b32 s44, s36, 1")
    a(f"s_mul_i32 s44, s44, {32*7168}")
    a("s_sub_u32 s45, s36, 4")
    a("s_lshl_b32 s45, s45, 13")
    for st in range(2):
        for i in range(8):
            a(f"s_add_u32 m0, s45, {st*SLOT + BLK + i*1024}")
            a(f"s_add_u32 s43, s44, {(st*64 + 8*(i >> 1))*7168}")
            a(f"buffer_load_dwordx4 v{10 + (i & 1)}, s[88:91], s43 offen lds")
    return 16

def phase_k3(a):
    stamp(a, 16)
    srd_m(a, 8, WS_H, 262144)
    a("s_cmp_lt_u32 s36, 4")
    a(f"s_cselect_b32 s44, s{PWG}, s{PWU}")
    a(f"s_cselect_b32 s45, s{PWG+1}, s{PWU+1}")
    a("s_lshl_b32 s43, s35, 8")
    srd(a, 12, 44, 1023*7168 + 256, add_lo=43)
    a("s_mul_i32 s43, s35, 192")
    srd(a, 16, 44, 1023*7168 + 192, add_lo=43, add_imm=4096)
    a("s_and_b32 s47, s36, 3")
    a("s_lshr_b32 s46, s36, 2")
    wsrc256(a, 3, 7168, 12, 13)
    a(f"s_mul_i32 s43, s47, {16*7168}")
    a("v_add_u32 v3, s43, v3")
    a("v_xor_b32 v4, 128, v3")
    a(f"v_add_u32 v4, {4*7168}, v4")
    a("s_lshl_b32 s40, s36, 12")
    a(f"s_add_u32 s40, s40, {BLK}")
    def dmaW(s):
        slot = (s % 3)*SLOT
        g = []
        if s < 16:
            for i in range(4):
                g.append([f"s_add_u32 m0, s40, {slot + i*1024}", f"s_mov_b32 s38, {(s*64 + 8*(i >> 1))*7168}",
                          f"buffer_load_dwordx4 v{3 + (i & 1)}, s[12:15], s38 offen lds"])
        else:
            for i in range(3):
                g.append([f"s_add_u32 m0, s50, {slot + i*1024}", f"s_mov_b32 s38, {(s-16)*64*7168}",
                          f"buffer_load_dwordx4 v{5+i}, s[16:19], s38 offen lds"])
        return g
    def dmaX(s):
        slot = (s % 3)*SLOT
        return [[f"s_add_u32 m0, s39, {slot}", f"s_mov_b32 s37, {(s % 16)*16384}", "buffer_load_dwordx4 v2, s[8:11], s37 offen sc1 lds"],
                ["buffer_load_dwordx4 v2, s[8:11], s37 offen offset:1024 sc1 lds"]]
    def emit(groups):
        for g in groups:
            for i in g: a(i)
    vm = []
    emit(dmaW(2)); vm += [2]*4
    a("v_lshlrev_b32 v31, 4, v1")
    a("s_lshl_b32 s39, s36, 11")
    a("v_add_u32 v2, s39, v31")
    srd_m(a, 20, WS_ST2, 16384)
    srd_m(a, 24, WS_HH, HH_M)
    for i in range(3):
        a(f"v_add_u32 v12, {64*i}, v1")
        a("v_mul_u32_u24 v13, 5462, v12")
        a("v_lshrrev_b32 v13, 16, v13")
        a("v_mul_u32_u24 v14, 12, v13")
        a("v_sub_u32 v14, v12, v14")
        a("v_bfe_u32 v15, v13, 2, 1")
        a("v_cmp_gt_u32 vcc, 8, v14")
        a("v_lshlrev_b32 v16, 1, v15")
        a("v_mul_u32_u24 v13, 7168, v13")
        a("v_cndmask_b32 v15, v15, v16, vcc")
        a("v_xor_b32 v14, v14, v15")
        a(f"v_lshl_add_u32 v{5+i}, v14, 4, v13")
    a(f"s_mul_i32 s43, s47, {16*7168}")
    for i in range(3): a(f"v_add_u32 v{5+i}, s43, v{5+i}")
    a("s_mul_i32 s50, s46, 12288")
    a("s_mul_i32 s43, s47, 3072")
    a("s_add_u32 s50, s50, s43")
    a(f"s_add_u32 s50, s50, {BLK}")
    a("s_lshl_b32 s43, s46, 12")
    a("v_add_u32 v8, s43, v31")
    a(f"v_add_u32 v9, {2*SLOT}, v8")
    a("s_lshr_b32 s43, s36, 1")
    a("s_lshl_b32 s43, s43, 11")
    a("v_add_u32 v10, s43, v31")
    a(f"v_add_u32 v11, {2*SLOT}, v10")
    wrd_base(a, 12, 256, 14, 15)
    a("s_lshl_b32 s43, s47, 6")
    a("v_xor_b32 v12, s43, v12")
    a(f"v_add_u32 v12, {BLK}, v12")
    a("v_xor_b32 v13, 32, v12")
    for sl in (1, 2):
        for e in range(2): a(f"v_add_u32 v{12+2*sl+e}, {sl*SLOT}, v{12+e}")
    a("s_and_b32 s51, s36, 1")
    a("v_lshrrev_b32 v27, 2, v1")
    a("v_bfe_u32 v28, v27, 2, 1")
    a("v_mul_u32_u24 v27, 192, v27")
    a(f"v_add_u32 v27, {BLK}, v27")
    a("v_and_b32 v29, 3, v1")
    a("v_lshl_add_u32 v18, v29, 3, v27")
    a("s_lshl_b32 s43, s51, 6")
    a("v_add_u32 v18, s43, v18")
    a("v_lshl_add_u32 v19, v28, 5, v18")
    a("v_xor_b32 v30, 1, v28")
    a("v_lshl_add_u32 v18, v30, 5, v18")
    a("v_mov_b32 v30, v18"); a("v_mov_b32 v18, v19"); a("v_mov_b32 v19, v30")
    a("v_xor_b32 v28, s51, v28")
    a("v_lshl_add_u32 v27, v28, 4, v27")
    a("v_lshrrev_b32 v28, 1, v29")
    a("v_lshl_add_u32 v27, v28, 5, v27")
    a("v_and_b32 v28, 1, v29")
    a("v_lshl_add_u32 v27, v28, 3, v27")
    a("v_add_u32 v20, 128, v27")
    for sl in (1, 2):
        for e in range(3): a(f"v_add_u32 v{18+3*sl+e}, {sl*SLOT}, v{18+e}")
    PFD = E("K3_PFD", 6)
    a("v_and_b32 v27, 7, v1")
    a("v_lshrrev_b32 v28, 2, v27")
    a("v_lshlrev_b32 v28, 6, v28")
    a("v_bfe_u32 v29, v27, 1, 1")
    a("s_lshl_b32 s43, s48, 3")
    a("s_lshl_b32 s44, s47, 1")
    a("s_add_u32 s43, s43, s44")
    a("v_add3_u32 v28, v28, v29, s43")
    a("v_mul_u32_u24 v28, 7168, v28")
    a("v_and_b32 v27, 1, v27")
    a("v_mul_u32_u24 v27, 188, v27")
    a("v_add_u32 v27, v27, v28")
    def pf(st):
        if not PFD or st >= 32: return []
        return [[f"s_mov_b32 s38, {(st % 16)*64*7168}", f"buffer_load_dword v28, v27, s[{12 if st < 16 else 16}:{15 if st < 16 else 19}], s38 offen"]]
    A1 = 128; A2 = 192
    def acc1(mt, c): return A1 + (mt*4+c)*4
    def acc2(mt, c): return A2 + (mt*6+c)*4
    for st in range(4, PFD+1, 2):
        emit(pf(st)); vm += ["pf"]
    for i in range(64): a(f"v_mov_b32 v{A1+i}, 0")
    Lnp = a.label("Lnp")
    a("s_cmp_lg_u32 s36, 4")
    a(f"s_cbranch_scc1 {Lnp}")
    flag_addr(a, "h", 29)
    poll_spin(a, 56, 29, 30, 16)
    a(f"{Lnp}:")
    stamp(a, 17)
    a("s_barrier")
    emit(dmaX(0)); vm += [0]*2
    ST = 96
    a(f"buffer_load_dwordx4 v[{ST}:{ST+3}], v2, s[20:23], 0 offen sc1")
    a(f"buffer_load_dwordx4 v[{ST+4}:{ST+7}], v2, s[20:23], 0 offen offset:1024 sc1"); vm += ["st"]*2
    emit(dmaX(1)); vm += [1]*2
    emit(dmaX(2)); vm += [2]*2
    def wait_tag(tag, extra=""):
        idx = max(i for i, t in enumerate(vm) if t == tag)
        a(f"s_waitcnt vmcnt({len(vm)-1-idx}){extra}")
    wait_tag(0)
    a("s_barrier")
    stamp(a, 18)
    SET = [32, 64]
    def reads(s, kk, base):
        sl = s % 3
        xo = (sl & 1)*SLOT + kk*8192
        if s < 16:
            def xr(mt): return f"ds_read_b128 v[{base+4*mt}:{base+4*mt+3}], v{8 + (sl >> 1)} offset:{xo + mt*1024}"
            def wr(c, h): return f"ds_read_b64_tr_b16 v[{base+16+4*c+2*h}:{base+16+4*c+2*h+1}], v{12+2*sl+(c & 1)} offset:{(c >> 1)*BLK + kk*8192 + h*4096}"
            return [xr(0), wr(0,0), wr(0,1), wr(1,0), wr(1,1), wr(2,0), wr(2,1), wr(3,0), wr(3,1), xr(1), xr(2), xr(3)]
        def xr(mt): return f"ds_read_b128 v[{base+4*mt}:{base+4*mt+3}], v{10 + (sl >> 1)} offset:{xo + mt*1024}"
        def wr(c, h): return f"ds_read_b64_tr_b16 v[{base+8+4*c+2*h}:{base+8+4*c+2*h+1}], v{18+3*sl+(c % 3)} offset:{(c // 3)*12288 + kk*6144 + h*3072}"
        return [xr(0), xr(1)] + [wr(c, h) for c in range(6) for h in range(2)]
    def mfmas(s, base):
        if s < 16: return [mfma(acc1(mt, c), base+16+4*c, base+4*mt) for (mt, c) in snake(4, 4)]
        return [mfma(acc2(mt, c), base+8+4*c, base+4*mt) for (c, mt) in snake(6, 2)]

    def stats_job():
        r = []
        for q in (0, 2): r.append(f"v_pk_add_f32 v[{ST+q}:{ST+q+1}], v[{ST+q}:{ST+q+1}], v[{ST+4+q}:{ST+5+q}]")
        r.append("s_nop 1")
        for x in range(4): r.append(f"v_add_f32_dpp v{ST+x}, v{ST+x}, v{ST+x} row_ror:8 row_mask:0xf bank_mask:0xf")
        for sw in ("16", "32"):
            for x in range(4): r.append(f"v_mov_b32 v{ST+4+x}, v{ST+x}")
            r.append("s_nop 0")
            for x in range(4): r.append(f"v_permlane{sw}_swap_b32 v{ST+x}, v{ST+4+x}")
            for x in range(4): r.append(f"v_add_f32 v{ST+x}, v{ST+x}, v{ST+4+x}")
        for x in range(4): r.append(f"v_mul_f32 v{ST+x}, 0x3a800000, v{ST+x}")
        for x in (0, 2): r.append(f"v_fma_f32 v{ST+x+1}, -v{ST+x}, v{ST+x}, v{ST+x+1}")
        for x in (0, 2): r.append(f"v_max_f32 v{ST+x+1}, 0, v{ST+x+1}")
        for x in (0, 2): r.append(f"v_add_f32 v{ST+x+1}, 0x3727c5ac, v{ST+x+1}")
        for x in (0, 2): r.append(f"v_rsq_f32 v{ST+x+1}, v{ST+x+1}")
        r.append(f"v_and_b32 v{ST+4}, 7, v1")
        r.append("s_lshl_b32 s43, s36, 7")
        r.append(f"s_add_u32 s43, s43, {STATS}")
        r.append(f"v_lshl_add_u32 v{ST+4}, v{ST+4}, 4, s43")
        r.append(f"ds_write_b128 v{ST+4}, v[{ST}:{ST+3}]")
        return r
    def f2_init_reads():
        r = ["v_lshrrev_b32 v120, 4, v1",
             "s_lshl_b32 s43, s51, 7", f"s_add_u32 s43, s43, {CSF + 512}",
             "v_lshl_add_u32 v121, v120, 4, s43",
             "v_lshrrev_b32 v122, 1, v120", "v_and_b32 v120, 1, v120",
             "s_lshl_b32 s43, s51, 5", f"s_add_u32 s43, s43, {CSF + 768}",
             "v_lshl_add_u32 v122, v122, 6, s43", "v_lshl_add_u32 v122, v120, 4, v122",
             "v_and_b32 v120, 15, v1", "s_lshr_b32 s43, s36, 1", "s_lshl_b32 s43, s43, 8", f"s_add_u32 s43, s43, {STATS}",
             "v_lshl_add_u32 v120, v120, 3, s43"]
        for c in range(6):
            r.append(f"ds_read_b128 v[{96+4*c}:{99+4*c}], v{122 if c % 3 == 2 else 121} offset:{(c // 3)*896 + (64*(c % 3) if c % 3 < 2 else 0)}")
        for mt in range(2): r.append(f"ds_read_b64 v[{240+2*mt}:{241+2*mt}], v120 offset:{mt*128}")
        return r
    def f2_init_mul():
        return [f"v_mul_f32 v{acc2(mt, c)+x}, -v{240+2*mt}, v{96+4*c+x}" for c in range(6) for mt in range(2) for x in range(4)]
    def f1_epi_reads():
        r = ["v_lshrrev_b32 v120, 4, v1", "s_lshl_b32 s43, s47, 7", f"s_add_u32 s43, s43, {CSF}",
             "v_lshl_add_u32 v121, v120, 4, s43",
             "v_and_b32 v120, 15, v1", "s_lshl_b32 s43, s46, 9", f"s_add_u32 s43, s43, {STATS}",
             "v_lshl_add_u32 v120, v120, 3, s43",
             "s_lshl_b32 s54, s35, 15", "s_lshl_b32 s43, s47, 13", "s_add_u32 s54, s54, s43", "s_lshl_b32 s43, s46, 12", "s_add_u32 s54, s54, s43"]
        for c in range(4): r.append(f"ds_read_b128 v[{96+4*c}:{99+4*c}], v121 offset:{(c >> 1)*896 + (c & 1)*64}")
        for mt in range(4): r.append(f"ds_read_b64 v[{112+2*mt}:{113+2*mt}], v120 offset:{mt*128}")
        return r
    def f1_epi(mt):
        K0, K1, IRS, T = 120, 121, 122, 124
        mean, rstd = 112+2*mt, 113+2*mt
        r = [f"v_mul_f32 v{IRS}, v{rstd}, v{rstd}", f"v_mul_f32 v{K0}, {fh(C0)}, v{rstd}", f"v_mul_f32 v{K1}, {fh(C1)}, v{rstd}",
             f"v_mul_f32 v{K1}, v{K1}, v{IRS}", f"v_rcp_f32 v{IRS}, v{IRS}"]
        for c in range(2):
            G = acc1(mt, c); U = acc1(mt, c+2)
            for x in range(4): r.append(f"v_fma_f32 v{G+x}, -v{mean}, v{96+4*c+x}, v{G+x}")
            for x in range(4): r.append(f"v_mul_f32 v{T+x}, v{G+x}, v{G+x}")
            for x in range(4): r.append(f"v_fma_f32 v{T+x}, v{T+x}, v{K1}, v{K0}")
            for x in range(4): r.append(f"v_mul_f32 v{T+x}, v{T+x}, v{G+x}")
            for x in range(4):
                r.append(f"v_exp_f32 v{T+x}, v{T+x}")
                r.append(f"v_fma_f32 v{U+x}, -v{mean}, v{104+4*c+x}, v{U+x}")
            for x in range(4): r.append(f"v_fma_f32 v{T+x}, v{T+x}, v{IRS}, v{IRS}")
            for x in range(4):
                r.append(f"v_rcp_f32 v{T+x}, v{T+x}")
                r.append(f"v_mul_f32 v{U+x}, v{G+x}, v{U+x}")
            for x in range(4): r.append(f"v_mul_f32 v{U+x}, v{U+x}, v{T+x}")
            P = acc1(mt, 0) + 2*c if c == 1 else acc1(mt, 0)
            r.append(f"v_cvt_pk_bf16_f32 v{P}, v{U}, v{U+1}")
            r.append(f"v_cvt_pk_bf16_f32 v{P+1}, v{U+2}, v{U+3}")
        return r
    def f1_store(mt):
        P = acc1(mt, 0)
        return f"buffer_store_dwordx4 v[{P}:{P+3}], v31, s[24:27], s54 offen offset:{mt*1024} sc1"

    side = {}
    def put(lst, slots):
        n = len(slots); k = 0
        for i, sl in enumerate(slots):
            cnt = (len(lst)*(i+1))//n - (len(lst)*i)//n
            side.setdefault(sl, []).extend(lst[k:k+cnt]); k += cnt
    put(stats_job(), [(0, 1), (1, 0), (1, 1)])
    put(f2_init_reads(), [(13, 1)])
    put(f2_init_mul(), [(14, 0), (14, 1), (15, 0), (15, 1)])
    put(f1_epi_reads(), [(16, 0)])
    EH = E("K3_EH", 4)
    stores = {}
    h0 = 33
    for mt in range(4):
        hs = [((h0 + mt*EH + i) >> 1, (h0 + mt*EH + i) & 1) for i in range(EH)]
        put(f1_epi(mt), hs)
        lastst, lasth = hs[-1]
        stores.setdefault(lastst + lasth, []).append(f1_store(mt))
    LST = max(stores)
    SG1 = LST + 2
    assert SG1 <= 28, SG1
    PL1 = E("K3_PL1", 28)
    assert PL1 == 28

    def wave_if(cond, w):
        L = a.label("Lw")
        a(f"s_cmp_{cond}_u32 s36, {w}")
        a(f"s_cbranch_scc0 {L}")
        return L
    def prod_if():
        L = a.label("Lw")
        a("s_sub_u32 s43, s36, 4")
        a("s_cmp_lt_u32 s43, 3")
        a(f"s_cbranch_scc0 {L}")
        return L
    CSP = E("K3_CSP", 6)
    RPG = E("K3_RPG", 2)
    def half(m, rd, sd, groups, gstart):
        n = len(m); k = 0; gi = 0; ri = 0
        for i in range(n):
            a(m[i])
            for q in range(RPG):
                if ri < len(rd): a(rd[ri]); ri += 1
            cnt = (len(sd)*(i+1))//n - (len(sd)*i)//n
            for x in sd[k:k+cnt]: a(x)
            k += cnt
            if i >= gstart and (i - gstart) % 2 == 0 and gi < len(groups):
                for x in groups[gi]: a(x)
                gi += 1
        for g in groups[gi:]:
            for x in g: a(x)
    for i in reads(0, 0, SET[0]): a(i)
    k4vm = None
    for s in range(32):
        a("s_waitcnt lgkmcnt(0)")
        half(mfmas(s, SET[0]), reads(s, 1, SET[1]), side.get((s, 0), []), [], 0)
        if s < 30:
            wait_tag(s+1, " lgkmcnt(0)")
        elif s == 30:
            L = prod_if(); Lo = a.label("Lw")
            a(f"s_waitcnt vmcnt({k4.early_count(0)})")
            a(f"s_branch {Lo}")
            a(f"{L}:")
            a("s_waitcnt vmcnt(0)")
            a(f"{Lo}:")
            a("s_waitcnt lgkmcnt(0)")
        else:
            L = prod_if()
            a(f"s_waitcnt vmcnt({k4.early_count(1)})")
            a(f"{L}:")
            a("s_waitcnt lgkmcnt(0)")
        if s == CSP + 1:
            L = wave_if("eq", 7)
            a(f"s_waitcnt vmcnt({ngrp})")
            poll_spin(a, 56, 29, 30, 224, have=True)
            srd(a, 84, PWS, 8*14336, add_imm=WS_CS)
            a("v_min_u32 v29, 55, v1")
            a("v_cmp_gt_u32 vcc, 32, v29")
            a("s_lshl_b32 s43, s35, 9")
            a("s_mul_i32 s44, s35, 384")
            a(f"s_add_u32 s44, s44, {8192 - 512}")
            a("v_mov_b32 v30, s44")
            a("v_mov_b32 v126, s43")
            a("v_cndmask_b32 v30, v30, v126, vcc")
            a("v_lshl_add_u32 v30, v29, 4, v30")
            for q in range(8):
                a(f"s_mov_b32 s43, {q*14336}")
                a(f"buffer_load_dwordx4 v[{96+4*q}:{99+4*q}], v30, s[84:87], s43 offen sc1")
            a(f"{L}:")
        if s == CSP + 3:
            L = wave_if("eq", 7)
            for mx in range(2):
                b = 96 + 4*mx
                for q in (0, 2):
                    a(f"v_pk_add_f32 v[{b+q}:{b+q+1}], v[{b+q}:{b+q+1}], v[{b+8+q}:{b+9+q}]")
                    a(f"v_pk_add_f32 v[{b+16+q}:{b+17+q}], v[{b+16+q}:{b+17+q}], v[{b+24+q}:{b+25+q}]")
                for q in (0, 2):
                    a(f"v_pk_add_f32 v[{b+q}:{b+q+1}], v[{b+q}:{b+q+1}], v[{b+16+q}:{b+17+q}]")
            a(f"v_lshlrev_b32 v29, 4, v29")
            a(f"v_add_u32 v29, {CSF}, v29")
            a("ds_write_b128 v29, v[96:99]")
            a("ds_write_b128 v29, v[100:103] offset:896")
            a("s_waitcnt lgkmcnt(0)")
            a(f"{L}:")
        if s == PL1 + 1:
            L = wave_if("eq", 7)
            a(f"s_waitcnt vmcnt({ngrp})")
            poll_spin(a, 56, 29, 30, 16, have=True)
            stamp(a, 21)
            a(f"{L}:")
        a("s_barrier")
        if s == 15: stamp(a, 19)
        if s == CSP:
            L = wave_if("eq", 7)
            flag_addr(a, "cs", 29, per_m=False)
            poll_issue(a, 56, 29, 30)
            a(f"{L}:")
        if s == SG1:
            L = wave_if("eq", 0)
            flag_signal(a, 56, "hh1", 29)
            stamp(a, 20)
            a(f"{L}:")
        if s == PL1:
            L = wave_if("eq", 7)
            flag_addr(a, "hh1", 29)
            poll_issue(a, 56, 29, 30)
            a(f"{L}:")
        groups = []
        if s + 3 < 32:
            groups = dmaW(s+3) + dmaX(s+3)
            vm += [s+3]*len(groups)
            if s % 2 == 0 and pf(s + PFD + 2):
                groups += pf(s + PFD + 2); vm += ["pf"]
            for x in stores.get(s, []):
                groups.append([x]); vm += ["hh"]
        ngrp = len(groups)
        if s == 28: k4.early_setup(a, wave_if)
        if s >= 29: k4.early_dma(a, wave_if, s - 29)
        m = mfmas(s, SET[1])
        if s < 31:
            half(m, reads(s+1, 0, SET[0]), side.get((s, 1), []), groups, max(0, len(m) - 2*len(groups)))
        else:
            k4.first_reads(a, wave_if, 0)
            half(m, [], [], [], 0)
            k4.first_reads(a, wave_if, 1)
        if s == 30: k4.early_resid(a, wave_if)
    stamp(a, 22)
    KK = 2
    for mt in range(2):
        b = KK + 4*mt; rstd = 241 + 2*mt
        a(f"v_mul_f32 v{b+2}, v{rstd}, v{rstd}")
        a(f"v_mul_f32 v{b}, {fh(C0)}, v{rstd}")
        a(f"v_mul_f32 v{b+1}, {fh(C1)}, v{rstd}")
        a(f"v_mul_f32 v{b+1}, v{b+1}, v{b+2}")
        a(f"v_rcp_f32 v{b+2}, v{b+2}")
    a("s_mul_i32 s54, s35, 24576")
    a("s_lshr_b32 s43, s36, 1")
    a("s_lshl_b32 s43, s43, 11")
    a("s_add_u32 s54, s54, s43")
    a(f"s_add_u32 s54, s54, {64*8192}")
    a("s_lshl_b32 s43, s51, 9")
    a("s_add_u32 s55, s54, s43")
    a("s_add_u32 s55, s55, 16384")
    a("s_lshl_b32 s43, s51, 13")
    a("s_add_u32 s54, s54, s43")
    a("v_and_b32 v10, 32, v1")
    a("v_lshlrev_b32 v10, 4, v10")
    a("v_add_u32 v10, v10, v31")
    PKS = 12
    def grp(mt, c, T):
        G = acc2(mt, c); U = acc2(mt, c+3); b = KK + 4*mt
        P = (PKS + 2*mt) if c == 2 else (acc2(mt, 0) + 2*c)
        st = []
        st.append([f"v_pk_mul_f32 v[{T+x}:{T+x+1}], v[{G+x}:{G+x+1}], v[{G+x}:{G+x+1}]" for x in (0, 2)])
        st.append([f"v_pk_fma_f32 v[{T+x}:{T+x+1}], v[{T+x}:{T+x+1}], v[{b}:{b+1}], v[{b}:{b+1}] op_sel:[0,1,0] op_sel_hi:[1,1,0]" for x in (0, 2)])
        st.append([f"v_pk_mul_f32 v[{T+x}:{T+x+1}], v[{T+x}:{T+x+1}], v[{G+x}:{G+x+1}]" for x in (0, 2)])
        st.append([f"v_exp_f32 v{T+x}, v{T+x}" for x in range(4)])
        st.append([f"v_pk_mul_f32 v[{U+x}:{U+x+1}], v[{G+x}:{G+x+1}], v[{U+x}:{U+x+1}]" for x in (0, 2)])
        st.append([f"v_pk_fma_f32 v[{T+x}:{T+x+1}], v[{T+x}:{T+x+1}], v[{b+2}:{b+3}], v[{b+2}:{b+3}] op_sel_hi:[1,0,0]" for x in (0, 2)])
        st.append([f"v_rcp_f32 v{T+x}, v{T+x}" for x in range(4)])
        st.append([f"v_pk_mul_f32 v[{U+x}:{U+x+1}], v[{U+x}:{U+x+1}], v[{T+x}:{T+x+1}]" for x in (0, 2)])
        st.append([f"v_cvt_pk_bf16_f32 v{P}, v{U}, v{U+1}", f"v_cvt_pk_bf16_f32 v{P+1}, v{U+2}, v{U+3}"])
        return st
    for c in (0, 1, 2):
        g0, g1 = grp(0, c, 16), grp(1, c, 20)
        for x, y in zip(g0, g1):
            for i in x: a(i)
            for i in y: a(i)
        if c == 1:
            for mt in range(2):
                P = acc2(mt, 0)
                a(f"buffer_store_dwordx4 v[{P}:{P+3}], v31, s[24:27], s54 offen offset:{mt*1024} sc1")
    a("s_nop 1")
    a(f"v_permlane32_swap_b32 v{PKS}, v{PKS+2}")
    a(f"v_permlane32_swap_b32 v{PKS+1}, v{PKS+3}")
    a(f"buffer_store_dwordx4 v[{PKS}:{PKS+3}], v10, s[24:27], s55 offen sc1")
    stamp(a, 23)
```

```python
from common import *

S = E("K4_S", 12)
JF = (24 - S)//2
J = 16 + JF
NT = J + S
NS = 5
SB = [6*BLK, 8*BLK, 0, 2*BLK, 4*BLK]
SG = E("K4_SG", 2)
ITJ = [("x", j) for j in range(16)] + [("w", j) for j in range(16)]
ITS = [("x", j) for j in range(16)] + [("w", j) for j in range(8)]
OWN = 128; GIV = 160
PV = 128

def early_count(k): return 20

def scal(a):
    a("s_bfe_u32 s61, s35, 0x10002")
    a("s_lshr_b32 s60, s35, 3")
    a("s_lshl_b32 s60, s60, 2")
    a("s_and_b32 s43, s35, 3")
    a("s_add_u32 s60, s60, s43")

def preg(p, mode, i):
    nx = len([1 for t, j in ITJ[p::3] if t == "x"])
    t, j = (ITJ if mode == "j" else ITS)[p::3][i]
    if t == "x" or mode == "j": return PV + i
    return PV + 11 + (i - nx)

def dma(a, p, idx):
    mode = "j" if idx < J else "s"
    mine = (ITJ if mode == "j" else ITS)[p::3]
    if idx == 16:
        a(f"s_mul_i32 s52, s61, {JF}")
        a("s_add_u32 s52, s52, 32")
        a("s_lshl_b32 s53, s52, 17")
        a("s_lshl_b32 s52, s52, 14")
    if idx == J:
        a(f"s_mov_b32 s52, {(56-S)*16384}")
        a(f"s_mov_b32 s53, {(56-S)*131072}")
    for i, (t, j) in enumerate(mine):
        a(f"s_mov_b32 m0, {SB[idx % NS] + (0 if t == 'x' else BLK) + j*1024}")
        a("s_nop 0")
        if t == "x": a(f"buffer_load_dwordx4 v{preg(p, mode, i)}, s[24:27], s52 offen sc1 lds")
        else: a(f"buffer_load_dwordx4 v{preg(p, mode, i)}, s[28:31], s53 offen lds")
    FK = E("K4_FAKE", "")
    a("s_add_u32 s52, s52, 16384" if "x" not in FK else "s_mov_b32 s52, 0")
    a("s_add_u32 s53, s53, 131072" if "w" not in FK else "s_mov_b32 s53, 0")
    return len(mine)

def early_setup(a, wave_if):
    scal(a)
    a("s_lshl_b32 s43, s60, 8")
    srd(a, 28, PWD, 3583*2048 + 256, add_lo=43)
    L = wave_if("lt", 4)
    a("s_lshr_b32 s62, s36, 1")
    a("s_and_b32 s63, s36, 1")
    a("s_lshl_b32 s43, s60, 2")
    a("s_lshl_b32 s44, s61, 1")
    a("s_add_u32 s43, s43, s44")
    a("s_add_u32 s43, s43, s63")
    a("s_lshl_b32 s43, s43, 13")
    a("s_lshl_b32 s44, s62, 12")
    a("s_add_u32 s43, s43, s44")
    for mt in range(4):
        a(f"buffer_load_dwordx4 v[{GIV+4*mt}:{GIV+4*mt+3}], v31, s[8:11], s43 offen offset:{mt*1024} sc1")
    a("v_add_u32 v244, s44, v31")
    a("v_add_u32 v244, 0x10000, v244")
    wrd_base(a, 245, 256, 118, 119)
    a(f"v_add_u32 v245, {BLK + 65536}, v245")
    a("s_lshl_b32 s43, s61, 7")
    a("s_lshl_b32 s44, s63, 6")
    a("s_add_u32 s43, s43, s44")
    a("v_xor_b32 v245, s43, v245")
    a("v_xor_b32 v246, 32, v245")
    a("v_xor_b32 v247, 128, v245")
    a("v_xor_b32 v248, 128, v246")
    a(f"{L}:")
    L = wave_if("ge", 4)
    a("s_lshl_b32 s52, s61, 18")
    a("s_lshl_b32 s53, s61, 21")
    wsrc256(a, 150, 2048, 152, 153)
    a("v_xor_b32 v151, 128, v150")
    wsrc128(a, 154, 2048, 152, 153)
    a("s_lshl_b32 s43, s61, 7")
    a("v_add_u32 v154, s43, v154")
    a(f"{L}:")
    for p in range(3):
        L = wave_if("eq", 4+p)
        for i, (t, j) in enumerate(ITJ[p::3]):
            if t == "x": a(f"v_add_u32 v{preg(p, 'j', i)}, {j*1024}, v31")
            else: a(f"v_add_u32 v{preg(p, 'j', i)}, {4*j*2048}, v{150 + (j & 1)}")
        for i, (t, j) in enumerate(ITS[p::3]):
            if t == "w": a(f"v_add_u32 v{preg(p, 's', i)}, {8*j*2048}, v154")
        a(f"{L}:")

def early_dma(a, wave_if, k):
    Le = a.label("Led")
    a("s_cmp_lt_u32 s36, 4")
    a(f"s_cbranch_scc1 {Le}")
    for p in range(3):
        L = wave_if("eq", 4+p)
        for idx in ((0, 1), (2,), (3, 4))[k]: dma(a, p, idx)
        a(f"{L}:")
    a(f"{Le}:")

def early_resid(a, wave_if):
    L = wave_if("lt", 4)
    for mt in range(4):
        for d in range(4):
            o = OWN + (mt*2 + (d >> 1))*4 + 2*(d & 1)
            a(f"v_lshlrev_b32 v{o}, 16, v{GIV+4*mt+d}")
            a(f"v_and_b32 v{o+1}, 0xffff0000, v{GIV+4*mt+d}")
    for i in range(32): a(f"v_mov_b32 v{GIV+i}, 0")
    a(f"{L}:")

SET = [[32, 64], [96, 192]]
XR = [9, 244, 10]
WJ = [11, 245, 15]
WS_ = [19, 21, 23]
def late_setup(a):
    a("v_subrev_u32 v9, 0x10000, v244")
    a("v_add_u32 v10, 0x10000, v244")
    for c in range(4):
        a(f"v_subrev_u32 v{11+c}, 0x10000, v{245+c}")
        a(f"v_add_u32 v{15+c}, 0x10000, v{245+c}")
def solo_setup(a):
    wrd_base(a, 19, 128, 25, 26)
    a(f"v_add_u32 v19, {BLK}, v19")
    a("s_lshl_b32 s43, s63, 6")
    a("v_xor_b32 v19, s43, v19")
    a("v_xor_b32 v20, 32, v19")
    for k in (1, 2):
        for c in range(2): a(f"v_add_u32 v{19+2*k+c}, {k*65536}, v{19+c}")

def reads(idx, kk):
    base = SET[idx & 1][kk]
    sb = SB[idx % NS]; k = sb >> 16; so = sb & 0xffff
    def xr(mt): return f"ds_read_b128 v[{base+4*mt}:{base+4*mt+3}], v{XR[k]} offset:{so + kk*8192 + mt*1024}"
    if idx < J:
        def wr(c, h): return f"ds_read_b64_tr_b16 v[{base+16+4*c+2*h}:{base+16+4*c+2*h+1}], v{WJ[k]+c} offset:{so + kk*8192 + h*4096}"
        return [xr(0), wr(0,0), wr(0,1), wr(1,0), wr(1,1), wr(2,0), wr(2,1), wr(3,0), wr(3,1), xr(1), xr(2), xr(3)]
    def wr(c, h): return f"ds_read_b64_tr_b16 v[{base+16+4*c+2*h}:{base+16+4*c+2*h+1}], v{WS_[k]+c} offset:{so + kk*4096 + h*2048}"
    return [xr(0), wr(0,0), wr(0,1), wr(1,0), wr(1,1), xr(1), xr(2), xr(3)]

def first_reads(a, wave_if, kk):
    L = wave_if("lt", 4)
    for i in reads(0, kk): a(i)
    a(f"{L}:")

def loop(a, lo, hi, body, per=5):
    NS = per
    n = (hi - lo) // NS
    if n >= 2:
        Ll = a.label("Lk4")
        a(f"s_mov_b32 s41, {n}")
        a(f"{Ll}:")
        for i in range(NS): body(lo + i, n)
        a("s_sub_u32 s41, s41, 1")
        a("s_cmp_lg_u32 s41, 0")
        a(f"s_cbranch_scc1 {Ll}")
        lo += n*NS
    for i in range(lo, hi): body(i, 1)

def phase_k4(a, Ld):
    Lprod = a.label("Lprod"); Lpf = a.label("Lpf")
    a("s_cmp_ge_u32 s36, 4")
    a(f"s_cbranch_scc1 {Lprod}")
    def accr(mt, c): return (OWN + (mt*2+c)*4) if c < 2 else (GIV + (mt*2+c-2)*4)
    def mfmas(idx, base):
        return [mfma(accr(mt, c), base+16+4*c, base+4*mt) for (mt, c) in snake(4, 4 if idx < J else 2)]
    XS_ = J + E("K4_XS", 3)
    XP_ = NT - E("K4_XP", 4)
    RPG = E("K4_RPG", 2)
    late_setup(a)
    def cstage(idx, rep=1):
        if idx == SG: a("s_waitcnt vmcnt(0)")
        a("s_waitcnt lgkmcnt(0)")
        a("s_barrier")
        if idx == XS_:
            a("s_waitcnt vmcnt(0)")
            a("s_mov_b64 exec, 1")
            a("buffer_store_dword v3, v4, s[56:59], 0 offen sc1")
            a("s_mov_b64 exec, -1")
            stamp(a, 27)
        if idx == XP_:
            poll_issue(a, 56, 5, 6)
        if idx == XP_ + 1:
            a("s_waitcnt vmcnt(0)")
            poll_spin(a, 56, 5, 6, 1, have=True, cnt=40)
            stamp(a, 28)
            for q in range(8):
                a(f"buffer_load_dwordx4 v[{GIV+4*q}:{GIV+4*q+3}], v31, s[84:87], s{46 + (q >> 2)} offen offset:{(q & 3)*1024} sc1")
        sd = []
        if idx == J:
            sd = [f"buffer_store_dwordx4 v[{GIV+4*q}:{GIV+4*q+3}], v31, s[84:87], s{44 + (q >> 2)} offen offset:{(q & 3)*1024} sc1" for q in range(8)]
        m = mfmas(idx, SET[idx & 1][0]) + mfmas(idx, SET[idx & 1][1])
        rd = [] if idx == NT-1 else reads(idx+1, 0) + reads(idx+1, 1)
        k = 0
        for i, x in enumerate(m):
            a(x)
            for q in range(RPG):
                if k < len(rd): a(rd[k]); k += 1
            if sd and i >= 8: a(sd.pop(0))
        if idx == 0:
            srd(a, 84, PWS, 256*32768, add_imm=WS_XCH)
            a("s_xor_b32 s43, s2, 2")
            a("s_lshl_b32 s44, s43, 2")
            a("s_add_u32 s44, s44, s36")
            a("s_lshl_b32 s44, s44, 13")
            a("s_add_u32 s45, s44, 4096")
            a("s_lshl_b32 s46, s2, 2")
            a("s_add_u32 s46, s46, s36")
            a("s_lshl_b32 s46, s46, 13")
            a("s_add_u32 s47, s46, 4096")
            a("s_add_u32 s43, s43, 128")
            a("s_lshl_b32 s43, s43, 7")
            a("s_lshl_b32 s42, s36, 2")
            a("s_add_u32 s43, s43, s42")
            a("v_mov_b32 v4, s43")
            a("s_add_u32 s43, s2, 128")
            a("s_lshl_b32 s43, s43, 7")
            a("s_add_u32 s43, s43, s42")
            a("v_mov_b32 v5, s43")
            a("v_mov_b32 v3, 1")
            a("s_lshl_b32 s43, s34, 18")
            a("s_lshl_b32 s42, s60, 8")
            a("s_add_u32 s43, s43, s42")
            a("s_lshl_b32 s42, s61, 7")
            a("s_add_u32 s43, s43, s42")
            a("s_lshl_b32 s42, s63, 6")
            a("s_add_u32 s43, s43, s42")
            srd(a, 20, POUT, 127*2048 + 64, add_lo=43)
            a("v_and_b32 v7, 15, v1")
            a("v_lshlrev_b32 v7, 12, v7")
            a("v_bfe_u32 v8, v1, 4, 1")
            a("v_lshl_add_u32 v7, v8, 5, v7")
            a("v_bfe_u32 v8, v1, 5, 1")
            a("v_lshl_add_u32 v7, v8, 4, v7")
            a("s_lshl_b32 s50, s62, 17")
            a("s_add_u32 s51, s50, 65536")
            solo_setup(a)
    stamp(a, 24)
    ev = sorted({0, SG, J-1, J, XS_, XP_, XP_+1, NT-1})
    lo = 0
    for e in ev:
        loop(a, lo, e, cstage, per=10)
        cstage(e); lo = e+1
        if e == J-1: stamp(a, 26)
    stamp(a, 29)
    a("s_waitcnt vmcnt(0)")
    stamp(a, 30)
    for mt in range(4):
        o = OWN + 8*mt
        for q in range(4): a(f"v_pk_add_f32 v[{o+2*q}:{o+2*q+1}], v[{o+2*q}:{o+2*q+1}], v[{GIV+8*mt+2*q}:{GIV+8*mt+2*q+1}]")
        for q in range(4): a(f"v_cvt_pk_bf16_f32 v{32+4*mt+q}, v{o+2*q}, v{o+2*q+1}")
        if mt > 0:
            P = 32 + 4*(mt-1)
            a(f"v_permlane16_swap_b32 v{P}, v{P+2}")
            a(f"v_permlane16_swap_b32 v{P+1}, v{P+3}")
            a(f"buffer_store_dwordx4 v[{P}:{P+3}], v7, s[20:23], s{50 + ((mt-1) >> 1)} offen offset:{((mt-1) & 1)*2048}")
    a("s_nop 1")
    a(f"v_permlane16_swap_b32 v44, v46")
    a(f"v_permlane16_swap_b32 v45, v47")
    a(f"buffer_store_dwordx4 v[44:47], v7, s[20:23], s51 offen offset:2048")
    a(f"s_branch {Ld}")

    a(f"{Lprod}:")
    a("s_cmp_eq_u32 s36, 7")
    a(f"s_cbranch_scc1 {Lpf}")
    Lp = [a.label("Lp") for _ in range(3)]
    for p in range(1, 3):
        a(f"s_cmp_eq_u32 s36, {4+p}")
        a(f"s_cbranch_scc1 {Lp[p]}")
    for p in range(3):
        a(f"{Lp[p]}:")
        nj = len(ITJ[p::3])
        vm = [i for i in range(NS) for _ in range(nj)] + ["hh"]*3
        def wv(tag):
            return len(vm) - 1 - max(i for i, t in enumerate(vm) if t == tag)
        def pstage(idx, rep=1):
            if idx + 1 < NT:
                n = wv(idx+1)
                if idx == SG: n = min(n, wv("hh"))
                a(f"s_waitcnt vmcnt({n})")
            a("s_barrier")
            if idx + NS < NT:
                n = dma(a, p, idx + NS)
                vm.extend([idx+NS]*n)
        def rolled(lo, hi):
            n = (hi - lo)//NS
            if n >= 2:
                k = len(vm)
                loop(a, lo, lo + n*NS, pstage)
                per = vm[k:]
                del vm[k:]
                for r in range(n): vm.extend([t + r*NS for t in per])
                lo += n*NS
            for i in range(lo, hi): pstage(i)
        cuts = [0, 5, 11, 12, J-NS, J, J+1, NT-NS, NT]
        cuts = sorted(set(c for c in cuts if 0 <= c <= NT))
        for lo, hi in zip(cuts[:-1], cuts[1:]):
            if lo >= 5 and hi - lo >= 2*NS: rolled(lo, hi)
            else:
                for i in range(lo, hi): pstage(i)
        a(f"s_branch {Ld}")

    a(f"{Lpf}:")
    PFD = E("K4_PFD", 0)
    P2 = E("K4_P2", 9)
    if PFD:
        a("v_lshrrev_b32 v2, 4, v1")
        a("v_lshlrev_b32 v2, 6, v2")
        a("v_bfe_u32 v3, v1, 1, 3")
        a("s_lshl_b32 s43, s48, 3")
        a("v_add3_u32 v2, v2, v3, s43")
        a("v_lshlrev_b32 v2, 11, v2")
        a("v_and_b32 v3, 1, v1")
        a("v_lshl_add_u32 v2, v3, 7, v2")
    def sid(idx):
        if idx < 16: return [f"s_lshl_b32 s43, s61, 21", f"s_add_u32 s43, s43, {idx*131072}"]
        if idx < J: return [f"s_mul_i32 s43, s61, {JF*131072}", f"s_add_u32 s43, s43, {(32 + idx - 16)*131072}"]
        return [f"s_mov_b32 s43, {(56 - S + idx - J)*131072}"]
    pfs = []
    if PFD:
        segs = [(NS, 16), (16, J), (J, NT)]
        for lo, hi in segs:
            for i in range(lo, hi, 4): pfs.append(i)
    def pf(i):
        for x in sid(i): a(x)
        a("buffer_load_dword v4, v2, s[28:31], s43 offen")
    while pfs and pfs[0] < PFD: pf(pfs.pop(0))
    flag_addr(a, "hh2", 8)
    for idx in range(NT):
        if idx == SG: a("s_waitcnt vmcnt(0)")
        if idx == 11:
            a("s_waitcnt vmcnt(0)")
            poll_spin(a, 56, 8, 9, 16, have=True)
            stamp(a, 25)
        a("s_barrier")
        if idx == P2: poll_issue(a, 56, 8, 9)
        if idx == SG:
            flag_signal(a, 56, "hh2", 10)
        if pfs and pfs[0] <= idx + PFD and not (8 <= idx < 11): pf(pfs.pop(0))
    a(f"s_branch {Ld}")
```

```python
import sys, os
sys.path.insert(0, os.path.dirname(__file__))
from common import *
import k1, k2, k3, k4

NAME = "sequential_preLN__sliding_local_dilated__glu_gated_geglu__prompt"
HEADER = open(f"/code/{NAME}.s.ref").read().split("; Override launch")[0]

def build(path, single):
    a = Asm()
    name = f"{NAME}_kernel" if single else "fused_kernel"
    kernel_header(a, name)
    Ld = a.label("Ldone"); Lx = a.label("Lexit")
    a("s_cmp_ge_u32 s2, 256")
    a(f"s_cbranch_scc1 {Lx}")
    a("s_load_dwordx16 s[64:79], s[0:1], 0")
    a("s_load_dwordx4 s[80:83], s[0:1], 64")
    stamp_init(a)
    a("s_and_b32 s3, s2, 7")
    a("s_lshr_b32 s42, s2, 3")
    a("s_and_b32 s34, s3, 1")
    a("s_lshl_b32 s34, s34, 3")
    a("s_and_b32 s48, s42, 7")
    a("s_add_u32 s34, s34, s48")
    a("s_lshr_b32 s35, s3, 1")
    a("s_lshr_b32 s49, s42, 3")
    a("s_lshl_b32 s35, s35, 2")
    a("s_add_u32 s35, s35, s49")
    a("v_lshrrev_b32 v12, 6, v0")
    a("v_and_b32 v1, 63, v0")
    a("v_readfirstlane_b32 s36, v12")
    stamp(a, 0)
    k1.phase_k1(a, ea_hook=k2.early_w)
    k2.phase_k2(a, k3.early_w)
    k3.phase_k3(a)
    k4.phase_k4(a, Ld)
    a(f"{Ld}:")
    stamp_flush(a)
    a(f"{Lx}:")
    a("s_endpgm")
    vg = 256
    launch = f"; @launch grid=(256,1,1) block=(512,1,1) lds={LDS_TOTAL}" if single else f"; @launch kernel={name} grid=(256,1,1) block=(512,1,1) lds={LDS_TOTAL}"
    out = HEADER + launch + "\n" + '.amdgcn_target "amdgcn-amd-amdhsa--gfx950"\n.text\n' + a.text()
    out += '.section .rodata,"a"\n' + kernel_desc(name, vg, 100, vg)
    open(path, "w").write(out)

if __name__ == "__main__":
    build(sys.argv[1], len(sys.argv) > 2)
```
